```python
import torch

def _softmax(x, axis=-1):
    return torch.softmax(x, dim=axis)
def _gelu(x):
    return torch.nn.functional.gelu(x, approximate="tanh")
def _silu(x):
    return torch.nn.functional.silu(x)
def _sigmoid(x):
    return torch.sigmoid(x)
def _layernorm(x, axis=-1, eps=1e-5):
    m = x.mean(dim=axis, keepdim=True)
    v = x.var(dim=axis, keepdim=True, unbiased=False)
    return (x - m) / torch.sqrt(v + eps)
def _scatter_add(tgt, idx, src, axis=0):
    return tgt.clone().index_add_(axis, idx, src)
def _segment_sum(src, seg, n):
    out = torch.zeros((n,) + src.shape[1:], dtype=src.dtype)
    return out.index_add_(0, seg, src)
def _pad(x, pw):
    flat = tuple(v for pair in reversed(pw) for v in pair)
    return torch.nn.functional.pad(x, flat)

kernel_name = 'concat_heads__ssm_conv_s4d__spectral_gfnet__prompt'

def setup_inputs():

    _w = (lambda a: (lambda t: t.to(torch.bfloat16) if t.is_floating_point() else t)(torch.as_tensor(a)))
    def _A_setup():
        Bsz, L, D, N = 1, 2048, 1024, 128
        return {
            "u": _w((lambda *s: torch.randn(*s, dtype=torch.bfloat16) * 0.05)(Bsz, L, D)),
            "log_A_real": _w((lambda *s: torch.randn(*s, dtype=torch.bfloat16) * 6.4)(D, N) * 0.5),
            "A_imag": _w((lambda *s: torch.randn(*s, dtype=torch.bfloat16) * 0.05)(D, N) * 3.14),
            "C_real": _w((lambda *s: torch.randn(*s, dtype=torch.bfloat16) * 0.05)(D, N) / N ** 0.5),
            "C_imag": _w((lambda *s: torch.randn(*s, dtype=torch.bfloat16) * 0.05)(D, N) / N ** 0.5),
            "log_dt": _w((lambda *s: torch.randn(*s, dtype=torch.bfloat16) * 0.05)(D) * 0.5 - 4.0),
            "D_skip": _w((lambda *s: torch.randn(*s, dtype=torch.bfloat16) * 0.05)(D)),
        }
    _A_in = _A_setup()

    def _B_setup():
        B, S, D = 1, 2048, 1024
        Df = D // 2 + 1
        return {
            "x": _w((lambda *s: torch.randn(*s, dtype=torch.bfloat16) * 0.05)(B, S, D)),
            "w_r": _w((lambda *s: torch.randn(*s, dtype=torch.bfloat16) * 0.8)(S, Df) * 0.02),
            "w_i": _w((lambda *s: torch.randn(*s, dtype=torch.bfloat16) * 0.8)(S, Df) * 0.02),
        }
    _B_in = _B_setup()

    return {
        "A_u": _A_in["u"],
        "A_log_A_real": _A_in["log_A_real"],
        "A_A_imag": _A_in["A_imag"],
        "A_C_real": _A_in["C_real"],
        "A_C_imag": _A_in["C_imag"],
        "A_log_dt": _A_in["log_dt"],
        "A_D_skip": _A_in["D_skip"],
        "B_x": _B_in["x"],
        "B_w_r": _B_in["w_r"],
        "B_w_i": _B_in["w_i"],
    }

def reference(A_u, A_log_A_real, A_A_imag, A_C_real, A_C_imag, A_log_dt, A_D_skip, B_x, B_w_r, B_w_i):
    def _A_ref(u, log_A_real, A_imag, C_real, C_imag, log_dt, D_skip):
        L = u.shape[1]
        dt = torch.exp(log_dt)
        A = -torch.exp(log_A_real) + 1j * A_imag
        C = (C_real + 1j * C_imag) * dt[:, None]
        pos = (lambda x, dt: x.to(dt))(torch.arange(L), log_dt.dtype)
        P = torch.exp((A * dt[:, None])[:, :, None] * pos[None, None, :])
        K = 2.0 * torch.einsum("dn,dnl->dl", C, P).real
        L2 = 2 * L
        u_t = (lambda x, *d: x.permute(*d))(u, 0, 2, 1)
        Kf = (lambda x, *a, **k: torch.fft.rfft(x.float(), *a, **k))(K, L2)
        Uf = (lambda x, *a, **k: torch.fft.rfft(x.float(), *a, **k))(u_t, L2)
        y = (lambda x, *a, **k: torch.fft.irfft(x, *a, **k).to(torch.bfloat16))(Uf * Kf[None, :, :], L2)[:, :, :L]
        y = (lambda x, *d: x.permute(*d))(y, 0, 2, 1)
        return y + u * D_skip[None, None, :]

    def _B_ref(x, w_r, w_i):
        B, S, D = x.shape
        X = (lambda x, axes=(-2,-1): torch.fft.rfft2(x.float(), dim=axes))(x, axes=(-2, -1))
        W = w_r + 1j * w_i
        X = X * W
        y = (lambda x, s, axes=(-2,-1): torch.fft.irfft2(x, s=s, dim=axes).to(torch.bfloat16))(X, (S, D), axes=(-2, -1))
        return y

    a = _A_ref(A_u, A_log_A_real, A_A_imag, A_C_real, A_C_imag, A_log_dt, A_D_skip)
    b = _B_ref(B_x, B_w_r, B_w_i)
    return torch.concatenate([a, b], axis=-1)
```

```python
import re, struct

TRANS = ("v_exp_f32", "v_log_f32", "v_rcp_f32", "v_rsq_f32", "v_sqrt_f32", "v_sin_f32", "v_cos_f32")

def f2u(x):
    return struct.unpack("<I", struct.pack("<f", x))[0]
def flit(x):
    return "0x%08x" % f2u(x)

def v(i, n=1):
    return f"v{i}" if n == 1 else f"v[{i}:{i+n-1}]"
def s(i, n=1):
    return f"s{i}" if n == 1 else f"s[{i}:{i+n-1}]"

_reg_re = re.compile(r"^(-|abs\()?([vsa])(\d+)\)?$")
_rng_re = re.compile(r"^(-)?([vsa])\[(\d+):(\d+)\]$")
def regs_of(op):
    op = op.strip()
    m = _reg_re.match(op)
    if m: return {(m.group(2), int(m.group(3)))}
    m = _rng_re.match(op)
    if m: return {(m.group(2), i) for i in range(int(m.group(3)), int(m.group(4)) + 1)}
    if op == "vcc": return {("s", 106), ("s", 107)}
    if op == "m0": return {("s", 124)}
    if op == "exec": return {("s", 126), ("s", 127)}
    return set()

class Ins:
    def __init__(self, op, args, mods=""):
        self.op, self.args, self.mods = op, list(args), mods
        self.text = "    " + op + (" " + ", ".join(str(a) for a in args) if args else "") + (" " + mods if mods else "")
        a = [str(x) for x in args]
        self.is_mfma = op.startswith("v_mfma")
        self.is_valu = op.startswith("v_") and not self.is_mfma
        self.is_trans = op in TRANS
        self.is_ds = op.startswith("ds_")
        self.is_vmem = op.startswith("buffer_") or op.startswith("global_")
        self.is_salu = op.startswith("s_")
        self.w, self.r = set(), set()
        self.srcC = set(); self.srcAB = set(); self.passes = 0
        self.wide_store_data = set()
        if self.is_mfma:
            self.w = regs_of(a[0]); self.srcAB = regs_of(a[1]) | regs_of(a[2]); self.srcC = regs_of(a[3])
            self.r = self.srcAB | self.srcC
            self.passes = 8 if "32x32" in op else 4
        elif self.is_valu:
            self.w = regs_of(a[0])
            rest = a[1:]
            if op.startswith(("v_add_co", "v_sub_co", "v_addc_co")):
                self.w |= regs_of(a[1]); rest = a[2:]
            for x in rest: self.r |= regs_of(x)
            if op.startswith(("v_fmac", "v_pk_fmac")) or "permlane" in op and "swap" in op:
                self.r |= self.w
            if "swap" in op: self.w |= regs_of(a[1])
            if op.startswith("v_writelane"): self.r |= self.w
        elif self.is_ds:
            if op.startswith("ds_read") or "permute" in op or "swizzle" in op:
                self.w = regs_of(a[0])
                for x in a[1:]: self.r |= regs_of(x)
            else:
                for x in a: self.r |= regs_of(x)
        elif self.is_vmem:
            if "load" in op and " lds" not in (" " + mods):
                self.w = regs_of(a[0])
                for x in a[1:]: self.r |= regs_of(x)
                if "d16" in op: self.r |= self.w
            else:
                for x in a: self.r |= regs_of(x)
                if "store" in op and ("x4" in op or "x3" in op):
                    self.wide_store_data = regs_of(a[0]) if op.startswith("buffer") else regs_of(a[1])
                if " lds" in (" " + mods): self.r |= {("s", 124)}
        elif self.is_salu:
            if op.startswith(("s_cmp", "s_cbranch", "s_branch", "s_waitcnt", "s_nop", "s_barrier", "s_endpgm", "s_setprio", "s_sleep")):
                for x in a: self.r |= regs_of(x)
            else:
                if a: self.w = regs_of(a[0])
                for x in a[1:]: self.r |= regs_of(x)
    def states(self):
        if self.op == "s_nop": return int(self.args[0]) + 1
        return 1

def need(p, c):
    n = 0
    vw = {x for x in p.w if x[0] in "va"}
    sw = {x for x in p.w if x[0] == "s"}
    if p.is_mfma:
        big = {4: 8, 8: 12}[p.passes]
        if c.is_mfma:
            if vw & c.srcAB: n = max(n, big)
            if vw & c.srcC:
                if not (c.srcC == vw and c.passes == p.passes): n = max(n, {4: 6, 8: 10}[p.passes])
            elif vw & c.w: n = max(n, big)
        elif c.is_valu or c.is_ds or c.is_vmem:
            if vw & (c.r | c.w): n = max(n, big)
        if c.is_valu and (p.srcC & c.w): n = max(n, {4: 3, 8: 7}[p.passes])
        if (c.is_ds or c.is_vmem) and (p.srcC & c.w): n = max(n, {4: 3, 8: 7}[p.passes])
    if p.is_valu:
        if c.is_mfma and vw & c.r: n = max(n, 2)
        if p.is_trans and c.is_valu and not c.is_trans and vw & c.r: n = max(n, 1)
        if p.is_trans and (c.is_mfma or c.is_ds or c.is_vmem or c.is_trans) and vw & c.r: n = max(n, 1)
        if c.is_valu and c.op.startswith(("v_readlane", "v_readfirstlane")) and vw & c.r: n = max(n, 1)
        if c.is_valu and ("permlane" in c.op or "dpp" in c.mods or "row_" in c.mods or "quad_perm" in c.mods) and vw & c.r: n = max(n, 2)
        if sw:
            if c.is_vmem and sw & c.r: n = max(n, 5)
            if c.is_valu and sw & c.r: n = max(n, 4 if c.op.startswith(("v_readlane", "v_writelane")) else 2)
            if c.is_salu and sw & c.r: n = max(n, 1)
            if c.is_ds and sw & c.r: n = max(n, 5)
    if p.is_salu and ("s", 124) in p.w and ("s", 124) in c.r and (c.is_vmem or c.is_ds): n = max(n, 1)
    if p.wide_store_data and (c.is_valu or c.is_mfma) and p.wide_store_data & c.w: n = max(n, 2)
    if p.wide_store_data and (c.is_ds or c.is_vmem) and p.wide_store_data & c.w: n = max(n, 1)
    return n

class Asm:
    def __init__(self):
        self.items = []
    def I(self, op, *args, mods=""):
        self.items.append(Ins(op, args, mods)); return self
    def label(self, name):
        self.items.append(name + ":")
    def raw(self, t):
        self.items.append(t)
    def comment(self, t):
        self.items.append("    ; " + t)
    def __getattr__(self, name):
        if name.startswith(("v_", "s_", "ds_", "buffer_", "global_")):
            def f(*args, mods=""):
                return self.I(name, *args, mods=mods)
            return f
        raise AttributeError(name)
    def finalize(self):
        out = []; hist = []
        nnop = 0
        for it in self.items:
            if isinstance(it, str):
                out.append(it); continue
            req = 0; dist = 0
            for p in reversed(hist):
                n = need(p, it)
                if n > dist: req = max(req, n - dist)
                dist += p.states()
                if dist >= 20: break
            while req > 0:
                k = min(req, 16)
                nop = Ins("s_nop", [k - 1]); out.append(nop.text); hist.append(nop); req -= k; nnop += 1
            out.append(it.text); hist.append(it)
            if len(hist) > 40: hist = hist[-40:]
        return "\n".join(out) + "\n"

def kernel(name, body, vgpr, sgpr=96):
    acc = (vgpr + 3) // 4 * 4
    return f""".text
.globl {name}
.p2align 8
.type {name},@function
{name}:
{body}
.section .rodata,"a"
.p2align 6
.amdhsa_kernel {name}
  .amdhsa_next_free_vgpr {vgpr}
  .amdhsa_next_free_sgpr {sgpr}
  .amdhsa_accum_offset {acc}
  .amdhsa_group_segment_fixed_size 0
  .amdhsa_kernarg_size 104
  .amdhsa_user_sgpr_count 2
  .amdhsa_user_sgpr_kernarg_segment_ptr 1
  .amdhsa_system_sgpr_workgroup_id_x 1
.end_amdhsa_kernel
"""
```

```python
import sys, math
from asmlib import *

WS_T1 = 0
WS_T2 = 0x500000
WS_UT = 0xA00000
WS_KD = 0xE00000
WS_OT = 0x1000000
WS_SIZE = 0x1400000
KA = dict(u=0, logA=8, Aim=16, Cre=24, Cim=32, logdt=40, Dskip=48, x=56, wr=64, wi=72, out=80, dbg=88, ws=96)
SZ = dict(u=4194304, logA=262144, Aim=262144, Cre=262144, Cim=262144, logdt=2048, Dskip=2048, x=4194304,
          wr=2048*513*2, wi=2048*513*2, out=8388608, dbg=256, ws=WS_SIZE)

def srd(a, d, name):
    a.s_load_dwordx2(s(d, 2), s(0, 2), KA[name])
    a.s_mov_b32(s(d+2), SZ[name])
    a.s_mov_b32(s(d+3), "0x00020000")

def lane_wave(a, vl, sw, vt):
    a.v_and_b32(v(vl), 63, v(0))
    a.v_lshrrev_b32(v(vt), 6, v(0))
    a.v_readfirstlane_b32(s(sw), v(vt))

def rev(a, d, f, k, base):
    if k == 0:
        return base
    a.v_fmamk_f32(v(d), v(f), flit(float(k)), v(base))
    return d

def cmul(a, d, x, y):
    a.v_pk_mul_f32(v(d, 2), v(x, 2), v(y, 2), mods="op_sel:[0,0] op_sel_hi:[0,1]")
    a.v_pk_fma_f32(v(d, 2), v(x, 2), v(y, 2), v(d, 2), mods="op_sel:[1,1,0] op_sel_hi:[1,0,1] neg_lo:[1,0,0]")

MF32 = "v_mfma_f32_32x32x16_bf16"
MF16 = "v_mfma_f32_16x16x32_bf16"
MF16K16 = "v_mfma_f32_16x16x16_bf16"

def job_p1(a, sid):
    E1 = 16384; EW = 4224
    srd(a, 8, "x"); srd(a, 16, "ws")
    L, T0, T1_, T2_, T3, T4, T5 = 1, 2, 3, 4, 5, 6, 7
    lane_wave(a, L, 4, T0)
    a.v_lshlrev_b32(v(T1_), 4, v(L))
    a.s_lshl_b32(s(5), s(4), 12)
    a.s_mov_b32("m0", s(5))
    a.s_lshl_b32(s(5), s(sid), 11)
    a.s_lshl_b32(s(6), s(4), 20)
    a.s_add_u32(s(5), s(5), s(6))
    a.s_add_u32(s(6), s(5), 256*2048 - 2048)
    a.s_waitcnt("lgkmcnt(0)")
    a.buffer_load_dwordx4(v(T1_), s(8, 4), s(5), mods="offen lds")
    a.buffer_load_dwordx4(v(T1_), s(8, 4), s(5), mods="offen offset:1024 lds")
    a.buffer_load_dwordx4(v(T1_), s(8, 4), s(6), mods="offen offset:2048 lds")
    a.buffer_load_dwordx4(v(T1_), s(8, 4), s(6), mods="offen offset:3072 lds")
    AF, BC, BS, TWC, TWS, GRE, GIM, S8 = 12, 28, 36, 44, 60, 76, 84, 92
    TRE = lambda sg: 96 + 32*sg
    TIM = lambda sg: 112 + 32*sg
    TMP = 160
    FK, FH, F, B = 8, 9, 10, 11
    a.v_and_b32(v(T0), 31, v(L)); a.v_cvt_f32_u32(v(FK), v(T0))
    a.v_lshrrev_b32(v(T2_), 5, v(L)); a.v_cvt_f32_u32(v(FH), v(T2_))
    a.v_mul_f32(v(F), flit(1/32), v(FK))
    a.v_mul_f32(v(B), v(F), v(FH)); a.v_mul_f32(v(B), flit(8.0), v(B))
    for k in range(2):
        for jp in range(4):
            r0 = rev(a, TMP+0, F, 16*k + 2*jp, B); r1 = rev(a, TMP+1, F, 16*k + 2*jp + 1, B)
            a.v_cos_f32(v(TMP+2), v(r0)); a.v_cos_f32(v(TMP+3), v(r1))
            a.v_sin_f32(v(TMP+4), v(r0)); a.v_sin_f32(v(TMP+5), v(r1))
            a.v_cvt_pk_bf16_f32(v(BC+4*k+jp), v(TMP+2), v(TMP+3))
            a.v_cvt_pk_bf16_f32(v(BS+4*k+jp), "-"+v(TMP+4), "-"+v(TMP+5))
    a.v_bfe_u32(v(T0), v(L), 2, 2)
    a.v_lshl_add_u32(v(T0), v(T2_), 3, v(T0))
    a.v_lshlrev_b32(v(T0), 6, v(T0))
    a.v_bfe_u32(v(T3), v(L), 4, 1)
    a.v_lshl_add_u32(v(T0), v(T3), 5, v(T0))
    a.v_and_b32(v(T3), 3, v(L))
    a.v_lshl_add_u32(v(T0), v(T3), 3, v(T0))
    a.s_lshl_b32(s(7), s(4), 12)
    a.v_add_u32(v(T0), s(7), v(T0))
    a.v_mul_f32(v(F), flit(1/1024), v(FK))
    a.v_mul_f32(v(B), v(F), v(FH)); a.v_mul_f32(v(B), 4.0, v(B))
    for rho in range(16):
        r0 = rev(a, TMP + (rho & 3), F, 8*(rho >> 2) + (rho & 3), B)
        a.v_cos_f32(v(TWC+rho), v(r0)); a.v_sin_f32(v(TWS+rho), v(r0))
    a.v_bfe_u32(v(T3), v(L), 1, 4); a.v_cvt_f32_u32(v(F), v(T3)); a.v_mul_f32(v(F), flit(1/32), v(F))
    a.v_and_b32(v(T3), 1, v(L)); a.v_cvt_f32_u32(v(T4), v(T3)); a.v_mul_f32(v(T4), flit(0.25), v(T4))
    a.v_mul_f32(v(B), v(F), v(FH)); a.v_fma_f32(v(B), v(B), 4.0, v(T4))
    for k in range(2):
        for jp in range(4):
            j = 2*jp
            r0 = rev(a, TMP+0, F, 16*k + 8*(j >> 2) + (j & 3), B); r1 = rev(a, TMP+1, F, 16*k + 8*(j >> 2) + (j & 3) + 1, B)
            a.v_cos_f32(v(TMP+2), v(r0)); a.v_cos_f32(v(TMP+3), v(r1))
            a.v_sin_f32(v(TMP+4), v(r0)); a.v_sin_f32(v(TMP+5), v(r1))
            a.v_cvt_pk_bf16_f32(v(GRE+4*k+jp), v(TMP+2), v(TMP+3))
            a.v_cvt_pk_bf16_f32(v(GIM+4*k+jp), v(TMP+4), v(TMP+5))
    a.v_bfe_u32(v(T3), v(L), 1, 3); a.v_cvt_f32_u32(v(F), v(T3)); a.v_mul_f32(v(F), flit(1/2048), v(F))
    a.v_lshrrev_b32(v(T5), 4, v(L))
    a.v_lshlrev_b32(v(B), 9, v(T5)); a.v_add_u32(v(B), s(sid), v(B)); a.v_cvt_f32_u32(v(B), v(B))
    a.v_fma_f32(v(B), v(B), v(F), v(T4))
    a.v_fmamk_f32(v(TMP+1), v(F), flit(256.0), v(B))
    a.v_cos_f32(v(TMP+2), v(B)); a.v_sin_f32(v(TMP+3), v(B))
    a.v_cos_f32(v(TMP+4), v(TMP+1)); a.v_sin_f32(v(TMP+5), v(TMP+1))
    a.v_cvt_pk_bf16_f32(v(S8), v(TMP+2), v(TMP+3)); a.v_cvt_pk_bf16_f32(v(S8+1), v(TMP+4), v(TMP+5))
    a.s_mov_b32(s(7), 33*16384)
    a.v_mul_lo_u32(v(F), v(T3), s(7))
    a.s_lshr_b32(s(7), s(sid), 6); a.s_and_b32(s(7), s(7), 1)
    a.v_and_b32(v(T3), 1, v(L)); a.v_xor_b32(v(T3), s(7), v(T3))
    a.v_lshl_add_u32(v(F), v(T3), 5, v(F))
    a.v_lshl_add_u32(v(F), v(T5), 3, v(F))
    a.s_and_b32(s(20), s(sid), 15); a.s_lshl_b32(s(20), s(20), 4)
    a.s_lshr_b32(s(21), s(sid), 4); a.s_add_u32(s(20), s(20), s(21)); a.s_lshl_b32(s(20), s(20), 6)
    if WS_T1: a.s_add_u32(s(20), s(20), WS_T1)
    a.s_add_u32(s(22), s(20), 32*16384)
    a.s_lshl_b32(s(21), s(4), 17); a.s_add_u32(s(20), s(20), s(21))
    a.v_and_b32(v(B), 31, v(L)); a.v_lshlrev_b32(v(B), 3, v(B)); a.v_lshl_add_u32(v(B), v(T2_), 9, v(B))
    a.s_mul_i32(s(7), s(4), EW); a.s_add_u32(s(7), s(7), E1)
    a.v_add_u32(v(B), s(7), v(B))
    a.v_min_u32(v(FK), 15, v(L)); a.v_lshlrev_b32(v(FK), 3, v(FK)); a.v_add_u32(v(FK), s(7), v(FK))
    a.v_mul_u32_u24(v(FH), EW, v(T5)); a.v_and_b32(v(T3), 15, v(L)); a.v_lshl_add_u32(v(FH), v(T3), 3, v(FH))
    a.v_add_u32(v(T3), E1, v(FH))
    a.s_lshl_b32(s(7), s(4), 10)
    a.v_add_u32(v(FH), s(7), v(T3))
    a.v_cmp_eq_u32("vcc", 0, v(L))
    a.v_mov_b32(v(T4), 1.0)
    a.v_mov_b32(v(T5), 0.5)
    a.v_cndmask_b32(v(T4), v(T4), v(T5), "vcc")
    a.s_waitcnt("vmcnt(0)")
    for sg in range(2):
        for k in range(2):
            for q in range(2):
                a.ds_read_b64_tr_b16(v(AF+8*sg+4*k+2*q, 2), v(T0), mods=f"offset:{sg*2048 + (16*k+4*q)*64}")
    for sg in range(2):
        a.s_waitcnt(f"lgkmcnt({4*(1-sg)})")
        for k in range(2):
            a.I(MF32, v(TRE(sg), 16), v(AF+8*sg+4*k, 4), v(BC+4*k, 4), 0 if k == 0 else v(TRE(sg), 16))
            a.I(MF32, v(TIM(sg), 16), v(AF+8*sg+4*k, 4), v(BS+4*k, 4), 0 if k == 0 else v(TIM(sg), 16))
    PK = lambda sg, part: 12 + 16*sg + 8*part
    NY = [T1_, T2_]
    for sg in range(2):
        for p in range(8):
            rr = 2*p; t = TMP + 4*(p & 1)
            a.v_pk_mul_f32(v(t, 2), v(TIM(sg)+rr, 2), v(TWS+rr, 2))
            a.v_pk_mul_f32(v(t+2, 2), v(TRE(sg)+rr, 2), v(TWS+rr, 2))
            a.v_pk_fma_f32(v(t, 2), v(TRE(sg)+rr, 2), v(TWC+rr, 2), v(t, 2))
            a.v_pk_fma_f32(v(t+2, 2), v(TIM(sg)+rr, 2), v(TWC+rr, 2), v(t+2, 2), mods="neg_lo:[0,0,1] neg_hi:[0,0,1]")
            if p > 0:
                a.v_pk_add_f32(v(TRE(sg), 2), v(TRE(sg), 2), v(TRE(sg)+rr, 2))
            a.v_cvt_pk_bf16_f32(v(PK(sg, 0)+p), v(t), v(t+1))
            a.v_cvt_pk_bf16_f32(v(PK(sg, 1)+p), v(t+2), v(t+3))
        a.v_sub_f32(v(NY[sg]), v(TRE(sg)), v(TRE(sg)+1))
        X = TRE(sg)
        first = True
        for part, Gm in ((0, GRE), (1, GIM)):
            for k in range(2):
                a.I(MF32, v(X, 16), v(Gm+4*k, 4), v(PK(sg, part)+4*k, 4), 0 if first else v(X, 16)); first = False
    EP = TIM(0)
    for sg in range(2):
        a.v_readlane_b32(s(24+sg), v(NY[sg]), 32)
    for sg in range(2):
        a.v_add_f32(v(NY[sg]), s(24+sg), v(NY[sg]))
        a.v_mul_f32(v(NY[sg]), 0.5, v(NY[sg]))
        a.v_cvt_pk_bf16_f32(v(TMP+sg), v(NY[sg]), 0)
    a.ds_write_b64(v(FK), v(TMP, 2), mods="offset:4096")
    for sg in range(2):
        X = TRE(sg)
        a.v_mul_f32(v(X), v(T4), v(X)); a.v_mul_f32(v(X+1), v(T4), v(X+1))
        for p in range(8):
            a.v_cvt_pk_bf16_f32(v(EP+2*p+sg), v(X+2*p), v(X+2*p+1))
            if sg == 1:
                a.ds_write_b64(v(B), v(EP+2*p, 2), mods=f"offset:{(4*(p >> 1) + (p & 1))*256}")
    a.s_waitcnt("lgkmcnt(0)")
    a.s_barrier()
    RD, DD, OP = 12, 128, 32
    for i in range(8):
        a.ds_read_b64(v(RD+2*i, 2), v(FH), mods=f"offset:{i*128}")
    a.ds_read_b64(v(RD+16, 2), v(T3), mods="offset:4096")
    for i in range(9):
        a.s_waitcnt(f"lgkmcnt({8-i})")
        a.I(MF16K16, v(DD+4*i, 4), v(RD+2*i, 2), v(S8, 2), 0)
    for i in range(8):
        a.v_cvt_pk_bf16_f32(v(OP+2*i), v(DD+4*i), v(DD+4*i+1))
        a.v_cvt_pk_bf16_f32(v(OP+2*i+1), v(DD+4*i+2), v(DD+4*i+3))
        if i: a.s_add_u32(s(20), s(20), 16384)
        a.buffer_store_dwordx2(v(OP+2*i, 2), v(F), s(16, 4), s(20), mods="offen")
    a.s_cmp_lg_u32(s(4), 0)
    a.s_cbranch_scc1("L_p1_end")
    a.v_cvt_pk_bf16_f32(v(OP+16), v(DD+32), v(DD+33))
    a.v_cvt_pk_bf16_f32(v(OP+17), v(DD+34), v(DD+35))
    a.buffer_store_dwordx2(v(OP+16, 2), v(F), s(16, 4), s(22), mods="offen")
    a.label("L_p1_end")
    a.s_endpgm()

L2E = 1.4426950408889634
L2E_HI = struct.unpack("<f", struct.pack("<I", 0x3FB8AA00))[0]
L2E_LO = L2E - L2E_HI
def exp_bf16(a, d, x, t):
    a.v_mul_f32(v(d), flit(L2E_HI), v(x))
    a.v_mul_f32(v(t), flit(L2E_LO), v(x))
    a.v_exp_f32(v(d), v(d)); a.v_exp_f32(v(t), v(t))
    a.v_mul_f32(v(d), v(d), v(t))
    a.v_cvt_pk_bf16_f32(v(d), v(d), v(d))
    a.v_and_b32(v(d), "0xffff0000", v(d))

ROUND2 = [0, 0, 2, 4, 4, 4, 6, 8, 8]
def slot_exp(h, slot):
    if slot <= 8: return slot if h == 0 else 256 + ROUND2[slot]
    if slot <= 11: return 512 + 256*h + 4*(slot - 9)
    if slot <= 13: return 1024 + 256*h + 8*(slot - 12)
    return 1536 + 256*h + 8*(slot - 14)
ROWS_OF = {}
for h in range(2):
    for slot in range(16):
        ROWS_OF.setdefault(slot_exp(h, slot), []).append(8*(slot >> 2) + 4*h + (slot & 3))

def job_kgen(a, sid):
    RS = 272
    srd(a, 8, "logA"); srd(a, 12, "Aim"); srd(a, 20, "Cre"); srd(a, 24, "Cim"); srd(a, 28, "logdt"); srd(a, 16, "ws")
    L, T0, T1_, WA, RA = 1, 2, 3, 4, 5
    lane_wave(a, L, 4, T0)
    a.s_lshr_b32(s(5), s(sid), 3); a.s_lshl_b32(s(5), s(5), 5)
    a.s_and_b32(s(6), s(sid), 7); a.s_add_u32(s(5), s(5), s(6))
    a.s_lshl_b32(s(6), s(4), 3); a.s_add_u32(s(5), s(5), s(6))
    a.s_lshl_b32(s(6), s(5), 8)
    a.s_lshl_b32(s(7), s(5), 1)
    a.v_lshlrev_b32(v(T0), 1, v(L))
    a.v_mov_b32(v(T1_), 0)
    PR = 6
    DT = 14
    for i in range(9): a.v_mov_b32(v(PR+i), 0)
    a.s_waitcnt("lgkmcnt(0)")
    a.buffer_load_short_d16_hi(v(DT), v(T1_), s(28, 4), s(7), mods="offen")
    for p in range(2):
        for i, sr in enumerate((8, 12, 20, 24)):
            a.buffer_load_short_d16_hi(v(PR+4*p+i), v(T0), s(sr, 4), s(6), mods=f"offen offset:{128*p}")
    a.s_mul_i32(s(7), s(4), 32*RS)
    a.v_lshlrev_b32(v(WA), 2, v(L)); a.v_add_u32(v(WA), s(7), v(WA))
    a.v_and_b32(v(RA), 31, v(L)); a.v_mul_u32_u24(v(RA), RS, v(RA))
    a.v_lshrrev_b32(v(T1_), 5, v(L)); a.v_lshl_add_u32(v(RA), v(T1_), 4, v(RA)); a.v_add_u32(v(RA), s(7), v(RA))
    ACC, BF, AFr, ST = 16, 32, 64, 96
    Z1, Z2, W1, W4, Q, CC = 128, 130, 132, 134, 136, 138
    CH = 140
    TM = 160
    A2, BE = 15, 164
    a.s_waitcnt("vmcnt(8)")
    exp_bf16(a, TM, DT, TM+1); a.v_mov_b32(v(DT), v(TM))
    def zpow(d, p):
        a.v_mul_f32(v(TM), flit(float(p)), v(A2)); a.v_mul_f32(v(TM+1), flit(float(p)), v(BE))
        a.v_exp_f32(v(TM), v(TM)); a.v_fract_f32(v(TM+1), v(TM+1))
        a.v_cos_f32(v(d), v(TM+1)); a.v_sin_f32(v(d+1), v(TM+1))
        a.v_mul_f32(v(d), v(d), v(TM)); a.v_mul_f32(v(d+1), v(d+1), v(TM))
    def setup(p):
        P = PR + 4*p
        exp_bf16(a, A2, P, TM)
        a.v_mul_f32(v(A2), v(A2), v(DT)); a.v_mul_f32(v(A2), flit(-L2E), v(A2))
        a.v_mul_f32(v(BE), v(P+1), v(DT)); a.v_mul_f32(v(BE), flit(1/(2*math.pi)), v(BE))
        a.v_mul_f32(v(CC), v(P+2), v(DT)); a.v_mul_f32(v(CC+1), v(P+3), v(DT))
        a.v_add_f32(v(CC), v(CC), v(CC)); a.v_add_f32(v(CC+1), v(CC+1), v(CC+1))
        zpow(W1, 8); zpow(Z1, 1); zpow(Q, 256)
    def cols(direct):
        def emit(j, r):
            a.v_cvt_pk_bf16_f32(v(ST+j), v(r), "-"+v(r+1))
            if direct: a.ds_write_b32(v(WA), v(ST+j), mods=f"offset:{j*RS}")
        a.v_mov_b32(v(ST), "0x00003f80")
        if direct: a.ds_write_b32(v(WA), v(ST), mods="offset:0")
        reg = lambda j: CH + 8*(((j - 1) >> 2) & 1) + 2*((j - 1) & 3)
        a.v_mov_b32(v(reg(1)), v(W1)); a.v_mov_b32(v(reg(1)+1), v(W1+1))
        cmul(a, reg(2), W1, W1)
        emit(1, reg(1))
        cmul(a, reg(3), reg(2), W1); cmul(a, reg(4), reg(2), reg(2))
        emit(2, reg(2))
        a.v_mov_b32(v(W4), v(reg(4))); a.v_mov_b32(v(W4+1), v(reg(4)+1))
        emit(3, reg(3)); emit(4, reg(4))
        for j0 in range(5, 32, 4):
            js = [j for j in range(j0, j0+4) if j < 32]
            for j in js: a.v_pk_mul_f32(v(reg(j), 2), v(reg(j-4), 2), v(W4, 2), mods="op_sel:[0,0] op_sel_hi:[0,1]")
            for j in js: a.v_pk_fma_f32(v(reg(j), 2), v(reg(j-4), 2), v(W4, 2), v(reg(j), 2), mods="op_sel:[1,1,0] op_sel_hi:[1,0,1] neg_lo:[1,0,0]")
            for j in js: emit(j, reg(j))
    rowidx = {}
    def rows():
        n = [0]
        def emit(e, r):
            rowidx[e] = n[0]
            a.v_cvt_pk_bf16_f32(v(ST+n[0]), v(r), v(r+1)); n[0] += 1
        E = lambda b, r: CH + 10*b + r
        cmul(a, Z2, Z1, Z1)
        a.v_mov_b32(v(E(0, 0)), v(CC)); a.v_mov_b32(v(E(0, 0)+1), v(CC+1))
        O = [TM, TM+2]
        cmul(a, O[0], CC, Z1)
        emit(0, CC)
        cmul(a, E(0, 2), CC, Z2); emit(1, O[0])
        for r in (2, 4, 6):
            i = (r >> 1) & 1
            cmul(a, O[i], O[1-i], Z2)
            cmul(a, E(0, r+2), E(0, r), Z2)
            emit(r, E(0, r)); emit(r+1, O[i])
        emit(8, E(0, 8))
        b = 0
        for base, rs in ((256, (0, 2, 4, 6, 8)), (512, (0, 4, 8)), (768, (0, 4, 8)), (1024, (0, 8)), (1280, (0, 8)), (1536, (0, 8)), (1792, (0, 8))):
            for r in rs: a.v_pk_mul_f32(v(E(1-b, r), 2), v(E(b, r), 2), v(Q, 2), mods="op_sel:[0,0] op_sel_hi:[0,1]")
            for r in rs: a.v_pk_fma_f32(v(E(1-b, r), 2), v(E(b, r), 2), v(Q, 2), v(E(1-b, r), 2), mods="op_sel:[1,1,0] op_sel_hi:[1,0,1] neg_lo:[1,0,0]")
            for r in rs: emit(base + r, E(1-b, r))
            b = 1 - b
    def write_rows():
        for e, idx in rowidx.items():
            for row in ROWS_OF[e]:
                a.ds_write_b32(v(WA), v(ST+idx), mods=f"offset:{row*RS}")
    def write_cols():
        for j in range(32): a.ds_write_b32(v(WA), v(ST+j), mods=f"offset:{j*RS}")
    def read_frags(dst):
        for k in range(8): a.ds_read_b128(v(dst+4*k, 4), v(RA), mods=f"offset:{k*32}")
    def mfmas(first):
        for k in range(8):
            a.s_waitcnt(f"lgkmcnt({7-k})")
            a.I(MF32, v(ACC, 16), v(AFr+4*k, 4), v(BF+4*k, 4), 0 if (first and k == 0) else v(ACC, 16))
    a.s_waitcnt("vmcnt(4)")
    setup(0); cols(True)
    a.s_waitcnt("lgkmcnt(0)"); read_frags(BF)
    rows()
    a.s_waitcnt("lgkmcnt(0)"); write_rows()
    a.s_waitcnt("lgkmcnt(0)"); read_frags(AFr)
    a.s_waitcnt("vmcnt(0)")
    setup(1)
    mfmas(True)
    cols(True)
    a.s_waitcnt("lgkmcnt(0)"); read_frags(BF)
    rows()
    a.s_waitcnt("lgkmcnt(0)"); write_rows()
    a.s_waitcnt("lgkmcnt(0)"); read_frags(AFr)
    mfmas(False)
    a.s_lshl_b32(s(5), s(sid), 2); a.s_add_u32(s(5), s(5), s(4)); a.s_lshl_b32(s(5), s(5), 11); a.s_add_u32(s(5), s(5), WS_KD)
    a.v_lshlrev_b32(v(T0), 4, v(L))
    for p in range(8): a.v_cvt_pk_bf16_f32(v(ST+p), v(ACC+2*p), v(ACC+2*p+1))
    a.buffer_store_dwordx4(v(ST, 4), v(T0), s(16, 4), s(5), mods="offen")
    a.buffer_store_dwordx4(v(ST+4, 4), v(T0), s(16, 4), s(5), mods="offen offset:1024")
    a.s_endpgm()

def job_trans(a, sid, fwd):
    if fwd: srd(a, 8, "u")
    else: srd(a, 8, "out")
    srd(a, 16, "ws")
    L, T0, CG, OC, VA, VB = 1, 2, 3, 4, 5, 6
    lane_wave(a, L, 4, T0)
    a.s_lshl_b32(s(3), s(sid), 2); a.s_add_u32(s(3), s(3), s(4))
    a.s_and_b32(s(4), s(3), 15)
    a.s_lshr_b32(s(5), s(3), 4)
    a.v_and_b32(v(CG), 7, v(L)); a.v_lshrrev_b32(v(OC), 3, v(L))
    rs = 11 if fwd else 12
    a.v_lshlrev_b32(v(VA), rs+3, v(OC)); a.v_lshl_add_u32(v(VA), v(CG), 4, v(VA))
    a.s_lshl_b32(s(6), s(5), rs+6); a.s_lshl_b32(s(7), s(4), 7); a.s_add_u32(s(6), s(6), s(7))
    a.v_lshrrev_b32(v(VB), 2, v(CG)); a.v_lshlrev_b32(v(VB), 17, v(VB)); a.v_lshl_add_u32(v(VB), v(OC), 6, v(VB))
    a.s_lshl_b32(s(7), s(5), 1)
    a.v_lshrrev_b32(v(T0), 2, v(OC)); a.v_add_u32(v(T0), s(7), v(T0)); a.v_xor_b32(v(T0), v(T0), v(CG)); a.v_and_b32(v(T0), 3, v(T0))
    a.v_lshl_add_u32(v(VB), v(T0), 4, v(VB))
    a.s_lshl_b32(s(20), s(4), 18); a.s_lshl_b32(s(7), s(5), 9); a.s_add_u32(s(20), s(20), s(7))
    a.s_add_u32(s(20), s(20), WS_UT if fwd else WS_OT)
    a.s_mov_b32(s(28), "0x05040100"); a.s_mov_b32(s(29), "0x07060302")
    a.s_waitcnt("lgkmcnt(0)")
    IN, OUT = 8, 40
    for i in range(8):
        if fwd:
            a.s_add_u32(s(7), s(6), i << rs)
            a.buffer_load_dwordx4(v(IN+4*i, 4), v(VA), s(8, 4), s(7), mods="offen")
        else:
            a.s_add_u32(s(7), s(20), i*16384)
            a.buffer_load_dwordx4(v(IN+4*i, 4), v(VB), s(16, 4), s(7), mods="offen")
    a.s_waitcnt("vmcnt(0)")
    for e in range(8):
        sel = s(28) if e % 2 == 0 else s(29)
        for p in range(4):
            a.v_perm_b32(v(OUT+4*e+p), v(IN+4*(2*p+1)+e//2), v(IN+4*(2*p)+e//2), sel)
        if fwd:
            a.s_add_u32(s(7), s(20), e*16384)
            a.buffer_store_dwordx4(v(OUT+4*e, 4), v(VB), s(16, 4), s(7), mods="offen")
        else:
            a.s_add_u32(s(7), s(6), e << rs)
            a.buffer_store_dwordx4(v(OUT+4*e, 4), v(VA), s(8, 4), s(7), mods="offen")
    a.s_endpgm()

def job_conv(a, sid):
    UI = 2048
    KT = 18432; KW = 8320; KO = 4160
    srd(a, 16, "ws"); srd(a, 8, "Dskip")
    L, T0, T1_, T2_, T3 = 1, 2, 3, 4, 5
    lane_wave(a, L, 4, T0)
    a.v_lshlrev_b32(v(T0), 4, v(L))
    a.s_lshl_b32(s(5), s(4), 12)
    a.s_add_u32(s(6), s(5), UI); a.s_mov_b32("m0", s(6))
    a.s_lshl_b32(s(6), s(sid), 14); a.s_add_u32(s(6), s(6), s(5))
    a.s_add_u32(s(21), s(6), WS_OT)
    a.s_add_u32(s(6), s(6), WS_UT)
    a.s_lshl_b32(s(7), s(sid), 2); a.s_add_u32(s(7), s(7), s(4)); a.s_lshl_b32(s(7), s(7), 11); a.s_add_u32(s(7), s(7), WS_KD)
    a.s_lshr_b32(s(22), s(sid), 3); a.s_lshl_b32(s(22), s(22), 5)
    a.s_and_b32(s(23), s(sid), 7); a.s_add_u32(s(22), s(22), s(23))
    a.s_lshl_b32(s(23), s(4), 3); a.s_add_u32(s(22), s(22), s(23)); a.s_lshl_b32(s(22), s(22), 1)
    ACC = 16
    KL = lambda buf, t: 48 + 32*buf + 4*t
    UL = lambda buf, t: 64 + 32*buf + 4*t
    KH = lambda t: 112 + 4*(t-4)
    UH = lambda t: 128 + 4*(t-4)
    SK = 144
    KB = 6
    UB = 10
    DS, EA = 14, 15
    TM = 160
    KD = 112
    a.v_mov_b32(v(DS), 0); a.v_mov_b32(v(T1_), 0)
    a.s_waitcnt("lgkmcnt(0)")
    a.buffer_load_dwordx4(v(KD, 4), v(T0), s(16, 4), s(7), mods="offen")
    a.buffer_load_dwordx4(v(KD+4, 4), v(T0), s(16, 4), s(7), mods="offen offset:1024")
    for i in range(4):
        a.buffer_load_dwordx4(v(T0), s(16, 4), s(6), mods=f"offen offset:{i*1024} lds")
    a.buffer_load_short_d16_hi(v(DS), v(T1_), s(8, 4), s(22), mods="offen")
    a.v_lshlrev_b32(v(T2_), 3, v(0))
    a.v_mov_b32(v(TM), 0); a.v_mov_b32(v(TM+1), 0); a.v_mov_b32(v(TM+2), 0); a.v_mov_b32(v(TM+3), 0)
    a.ds_write_b64(v(T2_), v(TM, 2))
    RHO, G = T2_, T3
    a.v_and_b32(v(RHO), 15, v(L)); a.v_lshrrev_b32(v(G), 4, v(L))
    a.s_mul_i32(s(24), s(4), KW); a.s_add_u32(s(24), s(24), KT)
    a.v_lshl_add_u32(v(T1_), v(G), 3, v(RHO)); a.v_sub_u32(v(T1_), 2055, v(T1_))
    a.v_and_b32(v(TM+4), 1, v(T1_))
    a.v_lshrrev_b32(v(T1_), 1, v(T1_)); a.v_lshlrev_b32(v(T1_), 2, v(T1_))
    a.v_mul_u32_u24(v(TM+4), KO + 4, v(TM+4)); a.v_add_u32(v(T1_), v(T1_), v(TM+4))
    a.v_add_u32(v(T1_), s(24), v(T1_))
    for T in range(4):
        a.v_subrev_u32(v(KB+T), 1024*T + 512 + 448, v(T1_))
    a.v_lshlrev_b32(v(T1_), 1, v(RHO)); a.v_sub_u32(v(T1_), v(T1_), v(G)); a.v_add_u32(v(T1_), 33, v(T1_))
    a.v_lshrrev_b32(v(TM+4), 2, v(T1_))
    a.v_lshlrev_b32(v(T1_), 6, v(T1_))
    for c in range(4):
        a.v_subrev_u32(v(TM+5), c, v(TM+4)); a.v_xor_b32(v(TM+5), s(4), v(TM+5)); a.v_and_b32(v(TM+5), 3, v(TM+5))
        a.v_lshl_add_u32(v(UB+c), v(TM+5), 4, v(T1_))
        a.v_subrev_u32(v(UB+c), c*256 + 1024, v(UB+c))
    a.v_lshrrev_b32(v(TM+4), 1, v(G)); a.v_lshl_add_u32(v(EA), v(RHO), 1, v(TM+4)); a.v_lshlrev_b32(v(EA), 6, v(EA))
    a.v_lshrrev_b32(v(TM+4), 1, v(RHO)); a.v_xor_b32(v(TM+4), s(4), v(TM+4)); a.v_and_b32(v(TM+4), 3, v(TM+4))
    a.v_lshl_add_u32(v(EA), v(TM+4), 4, v(EA))
    a.v_and_b32(v(TM+4), 1, v(G)); a.v_lshl_add_u32(v(EA), v(TM+4), 3, v(EA)); a.v_add_u32(v(EA), UI, v(EA))
    a.v_and_b32(v(T1_), 31, v(L)); a.v_lshlrev_b32(v(T1_), 4, v(T1_))
    a.v_lshrrev_b32(v(TM+4), 5, v(L)); a.v_lshl_add_u32(v(T1_), v(TM+4), 9, v(T1_))
    a.s_add_u32(s(25), s(24), 4080 - 3072)
    a.v_sub_u32(v(T1_), s(25), v(T1_))
    a.v_min_u32(v(TM+4), 4, v(L))
    a.v_lshlrev_b32(v(TM+5), 4, v(TM+4))
    a.v_add_u32(v(TM+6), KO + 4096, v(TM+5))
    a.v_add_u32(v(TM+5), 4096 - 48, v(TM+5))
    a.v_cmp_gt_u32("vcc", 3, v(TM+4))
    a.v_cndmask_b32(v(TM+5), v(TM+5), v(TM+6), "vcc")
    a.v_add_u32(v(TM+5), s(24), v(TM+5))
    a.v_cmp_eq_u32("vcc", 0, v(L))
    a.v_mov_b32(v(TM+6), "0x0000ffff")
    a.v_cndmask_b32(v(TM+6), 0, v(TM+6), "vcc")
    LO1, HI1, LO0, HI0 = 0x0100, 0x0302, 0x0504, 0x0706
    a.v_and_b32(v(TM+4), 1, v(L)); a.v_cmp_eq_u32("vcc", 0, v(TM+4))
    selcache = {}
    nexts = [30]
    def sel(lo, hi):
        key = (hi << 16) | lo
        if key not in selcache:
            selcache[key] = nexts[0]; a.s_mov_b32(s(nexts[0]), "0x%08x" % key); nexts[0] += 1
        return s(selcache[key])
    SA, SB = TM+7, TM+4
    a.v_mov_b32(v(SA), "0x%08x" % ((HI1 << 16) | HI1)); a.v_mov_b32(v(TM+3), "0x%08x" % ((LO1 << 16) | HI1))
    a.v_cndmask_b32(v(SA), v(SA), v(TM+3), "vcc")
    a.v_mov_b32(v(SB), "0x%08x" % ((LO1 << 16) | HI1)); a.v_mov_b32(v(TM+3), "0x%08x" % ((LO1 << 16) | LO1))
    a.v_cndmask_b32(v(SB), v(SB), v(TM+3), "vcc")
    a.v_mov_b32(v(TM+3), 0)
    a.s_waitcnt("vmcnt(5)")
    ST = 48
    def pick(dst, slo, shi):
        r0, r1 = KD + slo//2, KD + shi//2
        lo = LO1 if slo % 2 == 0 else HI1
        hi = LO0 if shi % 2 == 0 else HI0
        a.v_perm_b32(v(dst), v(r1), v(r0), sel(lo, hi))
    n = 0
    for grp in range(4):
        if grp == 0: m = list(range(9))
        elif grp == 1: m = [9, 9, 9, 10, 10, 10, 11, 11, 11]
        else:
            s0_ = 12 + 2*(grp-2); m = [s0_]*4 + [None] + [s0_+1]*4
        for odd in range(2):
            base = ST + 4*n; n += 1
            for q in range(4):
                hi_k = 6 - 2*q + odd; lo_k = hi_k + 1
                if m[lo_k] is None:
                    a.v_perm_b32(v(base+q), v(KD+m[0]//2), v(KD+m[0]//2), v(SB))
                elif m[hi_k] is None:
                    a.v_perm_b32(v(base+q), v(KD+m[0]//2), v(KD+m[0]//2), v(SA))
                else:
                    pick(base+q, m[lo_k], m[hi_k])
            a.ds_write_b128(v(T1_), v(base, 4), mods=f"offset:{(3-grp)*1024 + odd*KO}")
    a.v_and_b32(v(TM), v(TM+6), v(KD))
    a.ds_write_b128(v(TM+5), v(TM, 4))
    a.s_waitcnt("vmcnt(0) lgkmcnt(0)")
    a.s_barrier()
    def rdK(dst, c, t):
        o = (7-c)*16 + (1 - (t & 1))*128
        return [lambda: a.ds_read2_b32(v(dst, 2), v(KB + (t >> 1)), mods=f"offset0:{o} offset1:{o+1}"),
                lambda: a.ds_read2_b32(v(dst+2, 2), v(KB + (t >> 1)), mods=f"offset0:{o+2} offset1:{o+3}")]
    def rdU(dst, c, t):
        return [lambda: a.ds_read_b128(v(dst, 4), v(UB + (c & 3)), mods=f"offset:{t*2048 + (1-(c >> 2))*1024}")]
    def Kf(c, t): return KL(c & 1, t) if t < 4 else KH(t)
    def Uf(c, t): return UL(c & 1, t) if t < 4 else UH(t)
    for t in range(8):
        for f in rdK(Kf(0, t), 0, t) + rdU(Uf(0, t), 0, t): f()
    started = set()
    for c in range(8):
        seq = []
        for hgh in (7, 6, 5, 4):
            for lo in range(8-hgh): seq.append((lo, hgh, None))
            seq[-1] = (seq[-1][0], seq[-1][1], ("U", hgh))
            for lo in range(8-hgh): seq.append((hgh, lo, None))
            seq[-1] = (seq[-1][0], seq[-1][1], ("K", hgh))
        for tk in range(4):
            for tu in range(4): seq.append((tk, tu, None))
        pend = []
        if c < 7:
            for t in range(4): pend += rdK(Kf(c+1, t), c+1, t) + rdU(Uf(c+1, t), c+1, t)
        extra = []
        if c == 0:
            for al in range(8):
                pend.append(lambda al=al: a.ds_read_b64(v(SK+2*al, 2), v(EA), mods=f"offset:{al*2048}"))
        if c in (1, 2):
            for i in range(8*(c-1), 8*c):
                def f(i=i):
                    t = TM + 2*(i & 1)
                    a.v_lshlrev_b32(v(t), 16, v(SK+i)); a.v_and_b32(v(t+1), "0xffff0000", v(SK+i))
                    a.v_mul_f32(v(t), v(t), v(DS)); a.v_mul_f32(v(t+1), v(t+1), v(DS))
                    a.v_cvt_pk_bf16_f32(v(SK+i), v(t), v(t+1))
                extra.append(f)
        a.s_waitcnt("lgkmcnt(0)")
        for (tk, tu, fr) in seq:
            al = tk + tu
            a.I(MF16, v(ACC+4*al, 4), v(Kf(c, tk), 4), v(Uf(c, tu), 4), v(ACC+4*al, 4) if al in started else 0)
            started.add(al)
            if fr and c < 7:
                pend = (rdU(UH(fr[1]), c+1, fr[1]) if fr[0] == "U" else rdK(KH(fr[1]), c+1, fr[1])) + pend
            if pend: pend.pop(0)()
            elif extra: extra.pop(0)()
        assert not pend and not extra
    for al in range(8):
        for hh in range(2):
            i = 2*al + hh; t = TM + 2*(i & 3)
            a.v_lshlrev_b32(v(t), 16, v(SK+i)); a.v_and_b32(v(t+1), "0xffff0000", v(SK+i))
            a.v_pk_add_f32(v(t, 2), v(t, 2), v(ACC+2*i, 2))
            a.v_cvt_pk_bf16_f32(v(SK+i), v(t), v(t+1))
        a.ds_write_b64(v(EA), v(SK+2*al, 2), mods=f"offset:{al*2048}")
    a.s_waitcnt("lgkmcnt(0)")
    a.s_barrier()
    a.v_add_u32(v(T1_), s(5), v(T0))
    for i in range(4): a.ds_read_b128(v(48+4*i, 4), v(T1_), mods=f"offset:{UI + i*1024}")
    for i in range(4):
        a.s_waitcnt(f"lgkmcnt({3-i})")
        a.buffer_store_dwordx4(v(48+4*i, 4), v(T0), s(16, 4), s(21), mods=f"offen offset:{i*1024}")
    a.s_endpgm()

def job_p2(a, sid):
    R0, R1 = 0, 16384
    srd(a, 16, "ws"); srd(a, 8, "wr"); srd(a, 12, "wi")
    L, T0, T1_, T2_, T3, K, G = 1, 2, 3, 4, 5, 6, 7
    F, B, VW, VS = 8, 9, 10, 11
    lane_wave(a, L, 4, T0)
    a.s_and_b32(s(5), s(sid), 7); a.s_lshr_b32(s(6), s(sid), 3)
    a.s_mul_i32(s(7), s(5), 33); a.s_add_u32(s(7), s(7), s(6))
    a.s_lshl_b32(s(20), s(7), 14); a.s_lshl_b32(s(21), s(4), 12); a.s_add_u32(s(20), s(20), s(21))
    if WS_T1: a.s_add_u32(s(20), s(20), WS_T1)
    a.s_mov_b32("m0", s(21))
    a.v_lshlrev_b32(v(T0), 4, v(L))
    a.v_and_b32(v(K), 15, v(L)); a.v_lshrrev_b32(v(G), 4, v(L))
    CN = lambda j: 12 + 6*j
    WR = lambda j: 44 + 8*j
    WI = lambda j: 48 + 8*j
    OPR, ACC, PKD, TM = 76, 92, 124, 140
    for i in range(32): a.v_mov_b32(v(44+i), 0)
    a.s_mov_b32(s(22), 4*131328)
    a.v_mul_lo_u32(v(VW), v(G), s(22)); a.v_lshl_add_u32(v(VW), v(K), 1, v(VW))
    a.s_mul_i32(s(22), s(5), 1026); a.s_lshl_b32(s(23), s(6), 5); a.s_add_u32(s(22), s(22), s(23))
    a.s_mul_i32(s(23), s(4), 4*8208); a.s_add_u32(s(22), s(22), s(23))
    a.s_waitcnt("lgkmcnt(0)")
    for i in range(4):
        a.buffer_load_dwordx4(v(T0), s(16, 4), s(20), mods=f"offen offset:{i*1024} lds")
    for j in range(4):
        for r in range(4):
            a.s_add_u32(s(23), s(22), j*8208 + r*131328)
            a.buffer_load_short_d16_hi(v(WR(j)+r), v(VW), s(8, 4), s(23), mods="offen")
            a.buffer_load_short_d16_hi(v(WI(j)+r), v(VW), s(12, 4), s(23), mods="offen")
    a.v_cvt_f32_u32(v(F), v(K)); a.v_mul_f32(v(F), flit(1/256), v(F))
    a.v_lshlrev_b32(v(T1_), 6, v(G)); a.v_cvt_f32_u32(v(T2_), v(T1_)); a.v_mul_f32(v(T2_), v(T2_), v(F))
    a.s_lshl_b32(s(23), s(4), 2)
    a.v_add_u32(v(T1_), s(23), v(T1_)); a.v_cvt_f32_u32(v(B), v(T1_)); a.v_mul_f32(v(B), v(B), v(F))
    for j in range(5):
        for ep in range(2):
            bb = B if j < 4 else T2_; jj = j if j < 4 else 0
            r0 = rev(a, TM, F, 32*ep + jj, bb); r1 = rev(a, TM+1, F, 32*ep + 16 + jj, bb)
            a.v_cos_f32(v(TM+2), v(r0)); a.v_cos_f32(v(TM+3), v(r1))
            a.v_sin_f32(v(TM+4), v(r0)); a.v_sin_f32(v(TM+5), v(r1))
            if j == 4:
                for q in range(4): a.v_mul_f32(v(TM+2+q), flit(2.0**-10), v(TM+2+q))
            a.v_cvt_pk_bf16_f32(v(CN(j)+ep), "-"+v(TM+4), "-"+v(TM+5))
            a.v_cvt_pk_bf16_f32(v(CN(j)+2+ep), v(TM+2), v(TM+3))
            a.v_cvt_pk_bf16_f32(v(CN(j)+4+ep), v(TM+4), v(TM+5))
    a.v_bfe_u32(v(T1_), v(L), 2, 2); a.v_lshl_add_u32(v(T1_), v(G), 2, v(T1_)); a.v_lshlrev_b32(v(T1_), 6, v(T1_))
    a.v_and_b32(v(T2_), 3, v(L)); a.v_lshl_add_u32(v(T1_), v(T2_), 3, v(T1_))
    a.v_add_u32(v(T1_), s(21), v(T1_))
    a.v_and_b32(v(T2_), 1, v(G)); a.v_lshl_add_u32(v(T1_), v(T2_), 5, v(T1_))
    a.v_xor_b32(v(T2_), 32, v(T1_))
    a.v_lshlrev_b32(v(T3), 12, v(G)); a.v_lshl_add_u32(v(T3), v(K), 4, v(T3))
    a.s_lshl_b32(s(23), s(4), 8); a.v_add_u32(v(T3), s(23), v(T3))
    a.v_add_u32(v(F), s(21), v(T0))
    a.s_mov_b32(s(23), 16*264*64)
    a.v_mul_lo_u32(v(VS), v(K), s(23)); a.v_lshl_add_u32(v(VS), v(G), 4, v(VS))
    a.s_lshl_b32(s(24), s(7), 6); a.s_add_u32(s(24), s(24), WS_T2)
    a.s_mul_i32(s(23), s(4), 4*264*64); a.s_add_u32(s(24), s(24), s(23))
    RE = lambda j: ACC + 8*j
    IM = lambda j: ACC + 8*j + 4
    a.s_waitcnt("vmcnt(32)")
    for j in range(4):
        a.ds_read_b64_tr_b16(v(OPR+4*j, 2), v(T1_), mods=f"offset:{j*1024}")
        a.ds_read_b64_tr_b16(v(OPR+4*j+2, 2), v(T2_), mods=f"offset:{j*1024}")
    for j in range(4):
        a.s_waitcnt(f"lgkmcnt({6-2*j})")
        a.I(MF16, v(RE(j), 4), v(CN(j)+2, 4), v(OPR+4*j, 4), 0)
        a.I(MF16, v(IM(j), 4), v(CN(j), 4), v(OPR+4*j, 4), 0)
    def exch(region, first, second):
        for r in range(4):
            a.v_cvt_pk_bf16_f32(v(PKD+4*r), v(first(0)+r), v(first(1)+r))
            a.v_cvt_pk_bf16_f32(v(PKD+4*r+1), v(first(2)+r), v(first(3)+r))
            a.v_cvt_pk_bf16_f32(v(PKD+4*r+2), v(second(0)+r), v(second(1)+r))
            a.v_cvt_pk_bf16_f32(v(PKD+4*r+3), v(second(2)+r), v(second(3)+r))
            a.ds_write_b128(v(T3), v(PKD+4*r, 4), mods=f"offset:{region + r*1024}")
        a.s_waitcnt("lgkmcnt(0)")
        a.s_barrier()
        for j in range(4): a.ds_read_b128(v(OPR+4*j, 4), v(F), mods=f"offset:{region + j*1024}")
    exch(R1, RE, IM)
    for j in range(4):
        a.s_waitcnt(f"lgkmcnt({3-j})")
        a.I(MF16, v(RE(j), 4), v(CN(4)+2, 4), v(OPR+4*j, 4), 0)
        a.I(MF16, v(IM(j), 4), v(CN(4), 4), v(OPR+4*j, 4), 0)
    a.s_waitcnt("vmcnt(0)")
    for j in range(4):
        for p in range(2):
            t = TM + 4*p; r = 2*p
            a.v_pk_mul_f32(v(t, 2), v(IM(j)+r, 2), v(WI(j)+r, 2))
            a.v_pk_mul_f32(v(t+2, 2), v(RE(j)+r, 2), v(WI(j)+r, 2))
            a.v_pk_fma_f32(v(t, 2), v(RE(j)+r, 2), v(WR(j)+r, 2), v(t, 2), mods="neg_lo:[0,0,1] neg_hi:[0,0,1]")
            a.v_pk_fma_f32(v(t+2, 2), v(IM(j)+r, 2), v(WR(j)+r, 2), v(t+2, 2))
            a.v_cvt_pk_bf16_f32(v(PKD+4*j+2+p), v(t), v(t+1))
            a.v_cvt_pk_bf16_f32(v(PKD+4*j+p), v(t+2), v(t+3))
        a.I(MF16, v(RE(j), 4), v(CN(j), 4), v(PKD+4*j, 4), 0)
        a.I(MF16, v(IM(j), 4), v(CN(j)+2, 4), v(PKD+4*j, 4), 0)
    exch(R0, IM, RE)
    for j in range(4):
        a.s_waitcnt(f"lgkmcnt({3-j})")
        a.I(MF16, v(RE(j), 4), v(OPR+4*j, 4), v(CN(4), 4), 0)
        a.I(MF16, v(IM(j), 4), v(OPR+4*j, 4), v(CN(4)+2, 4), 0)
    for j in range(4):
        a.v_cvt_pk_bf16_f32(v(PKD+4*j), v(RE(j)), v(RE(j)+1)); a.v_cvt_pk_bf16_f32(v(PKD+4*j+1), v(RE(j)+2), v(RE(j)+3))
        a.v_cvt_pk_bf16_f32(v(PKD+4*j+2), v(IM(j)), v(IM(j)+1)); a.v_cvt_pk_bf16_f32(v(PKD+4*j+3), v(IM(j)+2), v(IM(j)+3))
        if j: a.s_add_u32(s(24), s(24), 264*64)
        a.buffer_store_dwordx4(v(PKD+4*j, 4), v(VS), s(16, 4), s(24), mods="offen")
    a.s_endpgm()

def job_p3(a, sid):
    E3 = 17408
    srd(a, 16, "ws"); srd(a, 8, "out")
    L, T0, T1_, T2_, T3, T4, G = 1, 2, 3, 4, 5, 6, 7
    FD, FH, F, B = 8, 9, 10, 11
    lane_wave(a, L, 4, T0)
    a.v_lshlrev_b32(v(T0), 4, v(L))
    a.s_lshl_b32(s(5), s(4), 12); a.s_mov_b32("m0", s(5))
    a.s_mul_i32(s(6), s(sid), 264*64); a.s_add_u32(s(6), s(6), WS_T2)
    a.s_add_u32(s(7), s(6), s(5))
    a.s_waitcnt("lgkmcnt(0)")
    for i in range(4):
        a.buffer_load_dwordx4(v(T0), s(16, 4), s(7), mods=f"offen offset:{i*1024} lds")
    a.s_cmp_lg_u32(s(4), 0)
    a.s_cbranch_scc1("L_p3_skip")
    a.s_mov_b32("m0", 16384)
    a.s_add_u32(s(7), s(6), 16384)
    a.buffer_load_dwordx4(v(T0), s(16, 4), s(7), mods="offen lds")
    a.label("L_p3_skip")
    S8, H = 12, 16
    Hf = lambda k, po: H + 8*k + 4*po
    TWC, TWS = 32, 48
    Jf = lambda pin, k: 64 + 8*pin + 4*k
    RD = 80
    URE = lambda sg: 100 + 32*sg
    UIM = lambda sg: 116 + 32*sg
    TMP = 164
    a.v_lshrrev_b32(v(G), 4, v(L))
    a.v_bfe_u32(v(T1_), v(L), 1, 3); a.v_lshlrev_b32(v(T1_), 8, v(T1_)); a.v_add_u32(v(T1_), s(sid), v(T1_))
    a.v_cvt_f32_u32(v(F), v(T1_)); a.v_mul_f32(v(F), flit(1/2048), v(F))
    a.v_and_b32(v(T1_), 1, v(G)); a.v_and_b32(v(T2_), 1, v(L)); a.v_sub_u32(v(T1_), v(T1_), v(T2_)); a.v_cvt_f32_i32(v(T1_), v(T1_))
    a.v_mul_f32(v(T1_), flit(0.25), v(T1_))
    a.v_lshrrev_b32(v(T2_), 5, v(L)); a.v_cvt_f32_u32(v(FH), v(T2_))
    a.v_mul_f32(v(B), v(F), v(FH)); a.v_fma_f32(v(B), v(B), 4.0, v(T1_))
    for e in range(4):
        r0 = rev(a, TMP+e, F, e, B)
        a.v_cos_f32(v(TMP+4+e), v(r0))
    a.v_cvt_pk_bf16_f32(v(S8), v(TMP+4), v(TMP+5)); a.v_cvt_pk_bf16_f32(v(S8+1), v(TMP+6), v(TMP+7))
    a.v_bfe_u32(v(T1_), v(L), 2, 2); a.v_lshl_add_u32(v(T1_), v(T2_), 2, v(T1_)); a.v_mul_u32_u24(v(T1_), 33*64, v(T1_))
    a.v_and_b32(v(T3), 3, v(L)); a.v_lshl_add_u32(v(T1_), v(T3), 4, v(T1_))
    a.v_and_b32(v(T3), 1, v(G)); a.v_lshl_add_u32(v(T1_), v(T3), 3, v(T1_))
    a.s_lshl_b32(s(7), s(4), 9)
    a.v_add_u32(v(T3), s(7), v(T1_))
    a.v_bfe_u32(v(T4), v(L), 2, 1); a.v_lshlrev_b32(v(T4), 4, v(T4))
    a.v_bfe_u32(v(FD), v(L), 3, 2); a.v_lshl_add_u32(v(T4), v(FD), 2, v(T4))
    a.v_and_b32(v(FD), 3, v(L)); a.v_add_u32(v(T4), v(T4), v(FD)); a.v_cvt_f32_u32(v(FD), v(T4))
    a.v_mul_f32(v(F), flit(1/32), v(FD)); a.v_mul_f32(v(B), v(F), v(FH)); a.v_mul_f32(v(B), 4.0, v(B))
    for k in range(2):
        for q in range(4):
            t = TMP + 4*(q & 1)
            r0 = rev(a, t, F, 8*k + q, B)
            a.v_cos_f32(v(t+1), v(r0)); a.v_sin_f32(v(t+2), v(r0))
            a.v_cvt_pk_bf16_f32(v(Hf(k, 0)+q), v(t+1), "-"+v(t+2))
            a.v_cvt_pk_bf16_f32(v(Hf(k, 1)+q), v(t+2), v(t+1))
    a.v_mul_f32(v(F), flit(1/1024), v(FD)); a.v_mul_f32(v(B), v(F), v(FH)); a.v_mul_f32(v(B), 4.0, v(B))
    for rho in range(16):
        r0 = rev(a, TMP + (rho & 3), F, 8*(rho >> 2) + (rho & 3), B)
        a.v_cos_f32(v(TWC+rho), v(r0)); a.v_sin_f32(v(TWS+rho), v(r0))
    a.v_and_b32(v(T4), 31, v(L)); a.v_cvt_f32_u32(v(F), v(T4)); a.v_mul_f32(v(F), flit(1/32), v(F))
    a.v_mul_f32(v(B), v(F), v(FH)); a.v_mul_f32(v(B), 4.0, v(B))
    for k in range(2):
        for jp in range(4):
            j = 2*jp
            r0 = rev(a, TMP+0, F, 16*k + 8*(j >> 2) + (j & 3), B); r1 = rev(a, TMP+1, F, 16*k + 8*(j >> 2) + (j & 3) + 1, B)
            a.v_cos_f32(v(TMP+2), v(r0)); a.v_cos_f32(v(TMP+3), v(r1))
            a.v_sin_f32(v(TMP+4), v(r0)); a.v_sin_f32(v(TMP+5), v(r1))
            a.v_cvt_pk_bf16_f32(v(Jf(0, k)+jp), v(TMP+2), v(TMP+3))
            a.v_cvt_pk_bf16_f32(v(Jf(1, k)+jp), "-"+v(TMP+4), "-"+v(TMP+5))
    a.v_and_b32(v(FD), 1, v(L)); a.v_cvt_f32_u32(v(FD), v(FD)); a.v_fma_f32(v(FD), v(FD), -2.0, 1.0)
    a.v_sub_f32(v(FH), 1.0, v(FH)); a.v_mul_f32(v(FD), v(FD), v(FH))
    a.v_and_b32(v(F), 15, v(L)); a.v_lshlrev_b32(v(F), 4, v(F)); a.v_lshl_add_u32(v(F), v(G), 12, v(F)); a.v_add_u32(v(F), s(7), v(F))
    a.v_add_u32(v(B), s(5), v(T0))
    a.v_lshlrev_b32(v(T4), 6, v(T4)); a.v_lshl_add_u32(v(T4), v(T2_), 5, v(T4))
    a.s_lshl_b32(s(20), s(sid), 12); a.s_lshl_b32(s(21), s(4), 21); a.s_add_u32(s(20), s(20), s(21))
    a.s_add_u32(s(21), s(20), 256*4096)
    a.s_lshl_b32(s(22), s(4), 4)
    a.s_waitcnt("vmcnt(0)")
    a.s_barrier()
    tiles = [(p, e) for p in range(2) for e in range(4)]
    for i, (p, e) in enumerate(tiles):
        a.ds_read_b64_tr_b16(v(RD+2*i, 2), v(T3), mods=f"offset:{(p + 2*e)*64}")
    a.ds_read_b64_tr_b16(v(RD+16, 2), v(T1_), mods=f"offset:{32*64}")
    DD = 100
    EP = 136
    for i in range(9):
        a.s_waitcnt(f"lgkmcnt({8-i})")
        a.I(MF16K16, v(DD+4*i, 4), v(S8, 2), v(RD+2*i, 2), 0)
    for p in range(2):
        for sg in range(2):
            base = EP + 8*p + 4*sg
            for e in range(4):
                d = DD + 4*(4*p + e) + 2*sg
                a.v_cvt_pk_bf16_f32(v(base+e), v(d), v(d+1))
            a.ds_write_b128(v(F), v(base, 4), mods=f"offset:{E3 + sg*2048 + p*256}")
    a.v_readlane_b32(s(24), v(DD+32), s(22)); a.v_readlane_b32(s(25), v(DD+34), s(22))
    a.s_waitcnt("lgkmcnt(0)")
    a.s_barrier()
    AF = 80
    for sg in range(2):
        for k in range(2):
            a.ds_read_b128(v(AF+8*sg+4*k, 4), v(B), mods=f"offset:{E3 + sg*2048 + k*1024}")
    for sg in range(2):
        for k in range(2):
            a.s_waitcnt(f"lgkmcnt({3-2*sg-k})")
            a.I(MF32, v(URE(sg), 16), v(AF+8*sg+4*k, 4), v(Hf(k, 0), 4), 0 if k == 0 else v(URE(sg), 16))
            a.I(MF32, v(UIM(sg), 16), v(AF+8*sg+4*k, 4), v(Hf(k, 1), 4), 0 if k == 0 else v(UIM(sg), 16))
    PK = lambda sg, part: (80 + 8*part) if sg == 0 else (16 + 8*part)
    for sg in range(2):
        a.v_fmac_f32(v(URE(sg)), s(24+sg), v(FD))
        for p in range(8):
            rr = 2*p; t = TMP + 4*(p & 1)
            a.v_pk_mul_f32(v(t, 2), v(UIM(sg)+rr, 2), v(TWS+rr, 2))
            a.v_pk_mul_f32(v(t+2, 2), v(URE(sg)+rr, 2), v(TWS+rr, 2))
            a.v_pk_fma_f32(v(t, 2), v(URE(sg)+rr, 2), v(TWC+rr, 2), v(t, 2), mods="neg_lo:[0,0,1] neg_hi:[0,0,1]")
            a.v_pk_fma_f32(v(t+2, 2), v(UIM(sg)+rr, 2), v(TWC+rr, 2), v(t+2, 2))
            a.v_cvt_pk_bf16_f32(v(PK(sg, 0)+p), v(t), v(t+1))
            a.v_cvt_pk_bf16_f32(v(PK(sg, 1)+p), v(t+2), v(t+3))
        Y = URE(sg); first = True
        for part in range(2):
            for k in range(2):
                a.I(MF32, v(Y, 16), v(PK(sg, part)+4*k, 4), v(Jf(part, k), 4), 0 if first else v(Y, 16)); first = False
    for sg in range(2):
        Y = URE(sg); O = UIM(sg)
        for p in range(8): a.v_cvt_pk_bf16_f32(v(O+p), v(Y+2*p), v(Y+2*p+1))
        a.buffer_store_dwordx4(v(O, 4), v(T4), s(8, 4), s(20+sg), mods="offen offset:2048")
        a.buffer_store_dwordx4(v(O+4, 4), v(T4), s(8, 4), s(20+sg), mods="offen offset:2064")
    a.s_endpgm()

def build_kernel(name, jobs, vgpr):
    a = Asm()
    start = 0
    for i, (cnt, fn) in enumerate(jobs):
        a.s_cmp_lt_u32(s(2), start + cnt)
        a.s_cbranch_scc1(f"L_{name}_{i}")
        start += cnt
    a.s_endpgm()
    body = a.finalize()
    start = 0
    for i, (cnt, fn) in enumerate(jobs):
        a = Asm()
        a.label(f"L_{name}_{i}")
        a.s_sub_u32(s(3), s(2), start)
        a.s_mov_b32(s(40), s(3))
        fn(a, 40)
        body += a.finalize()
        start += cnt
    return kernel(name, body, vgpr), start

def main(out):
    hdr = open("concat_heads__ssm_conv_s4d__spectral_gfnet__prompt.s.ref").read().split("; Override launch")[0]
    k1, n1 = build_kernel("k1_kernel", [(256, job_kgen), (256, job_p1), (128, lambda a, sid: job_trans(a, sid, True))], 168)
    k2, n2 = build_kernel("k2_kernel", [(256, job_conv), (264, job_p2)], 168)
    k3, n3 = build_kernel("k3_kernel", [(256, job_p3), (128, lambda a, sid: job_trans(a, sid, False))], 172)
    txt = hdr
    txt += f"; @launch kernel=k1_kernel grid=({n1},1,1) block=(256,1,1) lds=34816\n"
    txt += f"; @launch kernel=k2_kernel grid=({n2},1,1) block=(256,1,1) lds=51712\n"
    txt += f"; @launch kernel=k3_kernel grid=({n3},1,1) block=(256,1,1) lds=33792\n"
    txt += '.amdgcn_target "amdgcn-amd-amdhsa--gfx950"\n' + k1 + k2 + k3
    open(out, "w").write(txt)

if __name__ == "__main__":
    main(sys.argv[1] if len(sys.argv) > 1 else "v1.s")
```

```python
import sys, math
from asmlib import *

WS_T1 = 0
WS_T2 = 0x500000
WS_UT = 0xA00000
WS_KD = 0xE00000
WS_OT = 0x1000000
WS_ST = 0x1400000
WS_SIZE = 0x1500000
STAMP = False
OPT = {}
KIDX = [0]
KA = dict(u=0, logA=8, Aim=16, Cre=24, Cim=32, logdt=40, Dskip=48, x=56, wr=64, wi=72, out=80, dbg=88, ws=96)
SZ = dict(u=4194304, logA=262144, Aim=262144, Cre=262144, Cim=262144, logdt=2048, Dskip=2048, x=4194304,
          wr=2048*513*2, wi=2048*513*2, out=8388608, dbg=256, ws=WS_SIZE)

def srd(a, d, name):
    a.s_load_dwordx2(s(d, 2), s(0, 2), KA[name])
    a.s_mov_b32(s(d+2), SZ[name])
    a.s_mov_b32(s(d+3), "0x00020000")

def stamp_start(a):
    if not STAMP: return
    a.s_memrealtime(s(44, 2)); a.s_memtime(s(46, 2))
def stamp_mid(a, i):
    if not STAMP: return
    a.s_memrealtime(s(60+2*i, 2)); a.s_waitcnt("lgkmcnt(0)")
DBGSLOT = [0]
def endk(a):
    if STAMP and OPT.get("dbg"):
        n = DBGSLOT[0]; lab = f"L_dbg_{n}"
        sel = OPT["dbgsel"].pop(0)
        a.s_waitcnt("vmcnt(0)")
        a.s_memrealtime(s(52, 2))
        a.s_load_dwordx2(s(56, 2), s(0, 2), KA["dbg"])
        a.s_mov_b32(s(58), 256); a.s_mov_b32(s(59), "0x00020000")
        a.v_lshrrev_b32(v(1), 6, v(0)); a.v_readfirstlane_b32(s(54), v(1))
        a.s_waitcnt("lgkmcnt(0)")
        a.s_add_u32(s(56), s(56), 512*(2-KIDX[0])); a.s_addc_u32(s(57), s(57), 0)
        a.s_cmp_lg_u32(s(40), 40); a.s_cbranch_scc1(lab)
        a.s_cmp_lg_u32(s(54), 1); a.s_cbranch_scc1(lab)
        a.v_mov_b32(v(1), 0)
        for r in sel:
            a.v_mov_b32(v(2), s(r))
            a.buffer_store_dword(v(2), v(1), s(56, 4), 0, mods=f"offen offset:{4*DBGSLOT[0]}")
            DBGSLOT[0] += 1
        a.label(lab)
    elif STAMP:
        a.s_memrealtime(s(48, 2))
        a.s_waitcnt("vmcnt(0)")
        a.s_memrealtime(s(52, 2)); a.s_memtime(s(50, 2))
        a.s_load_dwordx2(s(56, 2), s(0, 2), KA["ws"])
        a.s_mov_b32(s(58), WS_SIZE); a.s_mov_b32(s(59), "0x00020000")
        a.s_getreg_b32(s(54), "hwreg(HW_REG_XCC_ID)")
        a.s_getreg_b32(s(55), "hwreg(HW_REG_HW_ID)")
        a.s_waitcnt("lgkmcnt(0)")
        a.s_sub_u32(s(50), s(50), s(46))
        for i, r in enumerate((44, 48, 52, 50, 54, 55, 60, 62, 64, 66, 68, 70)): a.v_mov_b32(v(2+i), s(r))
        a.v_lshrrev_b32(v(1), 6, v(0)); a.v_lshlrev_b32(v(1), 6, v(1))
        a.s_lshl_b32(s(44), s(2), 8); a.s_add_u32(s(44), s(44), WS_ST + KIDX[0]*0x40000)
        a.buffer_store_dwordx4(v(2, 4), v(1), s(56, 4), s(44), mods="offen")
        a.buffer_store_dwordx4(v(6, 4), v(1), s(56, 4), s(44), mods="offen offset:16")
        a.buffer_store_dwordx4(v(10, 4), v(1), s(56, 4), s(44), mods="offen offset:32")
    a.s_endpgm()

def lane_wave(a, vl, sw, vt):
    a.v_and_b32(v(vl), 63, v(0))
    a.v_lshrrev_b32(v(vt), 6, v(0))
    a.v_readfirstlane_b32(s(sw), v(vt))

def rev(a, d, f, k, base):
    if k == 0:
        return base
    a.v_fmamk_f32(v(d), v(f), flit(float(k)), v(base))
    return d

def cmul(a, d, x, y):
    a.v_pk_mul_f32(v(d, 2), v(x, 2), v(y, 2), mods="op_sel:[0,0] op_sel_hi:[0,1]")
    a.v_pk_fma_f32(v(d, 2), v(x, 2), v(y, 2), v(d, 2), mods="op_sel:[1,1,0] op_sel_hi:[1,0,1] neg_lo:[1,0,0]")

MF32 = "v_mfma_f32_32x32x16_bf16"
MF16 = "v_mfma_f32_16x16x32_bf16"
MF16K16 = "v_mfma_f32_16x16x16_bf16"

def job_p1(a, sid):
    E1 = 16384; EW = 4224
    srd(a, 8, "x"); srd(a, 16, "ws")
    L, T0, T1_, T2_, T3, T4, T5 = 1, 2, 3, 4, 5, 6, 7
    lane_wave(a, L, 4, T0)
    a.v_lshlrev_b32(v(T1_), 4, v(L))
    a.s_lshl_b32(s(5), s(4), 12)
    a.s_mov_b32("m0", s(5))
    a.s_lshl_b32(s(5), s(sid), 11)
    a.s_lshl_b32(s(6), s(4), 20)
    a.s_add_u32(s(5), s(5), s(6))
    a.s_add_u32(s(6), s(5), 256*2048 - 2048)
    a.s_waitcnt("lgkmcnt(0)")
    a.buffer_load_dwordx4(v(T1_), s(8, 4), s(5), mods="offen lds")
    a.buffer_load_dwordx4(v(T1_), s(8, 4), s(5), mods="offen offset:1024 lds")
    a.buffer_load_dwordx4(v(T1_), s(8, 4), s(6), mods="offen offset:2048 lds")
    a.buffer_load_dwordx4(v(T1_), s(8, 4), s(6), mods="offen offset:3072 lds")
    AF, BC, BS, TWC, TWS, GRE, GIM, S8 = 12, 28, 36, 44, 60, 76, 84, 92
    TRE = lambda sg: 96 + 32*sg
    TIM = lambda sg: 112 + 32*sg
    TMP = 160
    FK, FH, F, B = 8, 9, 10, 11
    a.v_and_b32(v(T0), 31, v(L)); a.v_cvt_f32_u32(v(FK), v(T0))
    a.v_lshrrev_b32(v(T2_), 5, v(L)); a.v_cvt_f32_u32(v(FH), v(T2_))
    a.v_mul_f32(v(F), flit(1/32), v(FK))
    a.v_mul_f32(v(B), v(F), v(FH)); a.v_mul_f32(v(B), flit(8.0), v(B))
    for k in range(2):
        for jp in range(4):
            r0 = rev(a, TMP+0, F, 16*k + 2*jp, B); r1 = rev(a, TMP+1, F, 16*k + 2*jp + 1, B)
            a.v_cos_f32(v(TMP+2), v(r0)); a.v_cos_f32(v(TMP+3), v(r1))
            a.v_sin_f32(v(TMP+4), v(r0)); a.v_sin_f32(v(TMP+5), v(r1))
            a.v_cvt_pk_bf16_f32(v(BC+4*k+jp), v(TMP+2), v(TMP+3))
            a.v_cvt_pk_bf16_f32(v(BS+4*k+jp), "-"+v(TMP+4), "-"+v(TMP+5))
    a.v_bfe_u32(v(T0), v(L), 2, 2)
    a.v_lshl_add_u32(v(T0), v(T2_), 3, v(T0))
    a.v_lshlrev_b32(v(T0), 6, v(T0))
    a.v_bfe_u32(v(T3), v(L), 4, 1)
    a.v_lshl_add_u32(v(T0), v(T3), 5, v(T0))
    a.v_and_b32(v(T3), 3, v(L))
    a.v_lshl_add_u32(v(T0), v(T3), 3, v(T0))
    a.s_lshl_b32(s(7), s(4), 12)
    a.v_add_u32(v(T0), s(7), v(T0))
    a.v_mul_f32(v(F), flit(1/1024), v(FK))
    a.v_mul_f32(v(B), v(F), v(FH)); a.v_mul_f32(v(B), 4.0, v(B))
    for rho in range(16):
        r0 = rev(a, TMP + (rho & 3), F, 8*(rho >> 2) + (rho & 3), B)
        a.v_cos_f32(v(TWC+rho), v(r0)); a.v_sin_f32(v(TWS+rho), v(r0))
    a.v_bfe_u32(v(T3), v(L), 1, 4); a.v_cvt_f32_u32(v(F), v(T3)); a.v_mul_f32(v(F), flit(1/32), v(F))
    a.v_and_b32(v(T3), 1, v(L)); a.v_cvt_f32_u32(v(T4), v(T3)); a.v_mul_f32(v(T4), flit(0.25), v(T4))
    a.v_mul_f32(v(B), v(F), v(FH)); a.v_fma_f32(v(B), v(B), 4.0, v(T4))
    for k in range(2):
        for jp in range(4):
            j = 2*jp
            r0 = rev(a, TMP+0, F, 16*k + 8*(j >> 2) + (j & 3), B); r1 = rev(a, TMP+1, F, 16*k + 8*(j >> 2) + (j & 3) + 1, B)
            a.v_cos_f32(v(TMP+2), v(r0)); a.v_cos_f32(v(TMP+3), v(r1))
            a.v_sin_f32(v(TMP+4), v(r0)); a.v_sin_f32(v(TMP+5), v(r1))
            a.v_cvt_pk_bf16_f32(v(GRE+4*k+jp), v(TMP+2), v(TMP+3))
            a.v_cvt_pk_bf16_f32(v(GIM+4*k+jp), v(TMP+4), v(TMP+5))
    a.v_bfe_u32(v(T3), v(L), 1, 3); a.v_cvt_f32_u32(v(F), v(T3)); a.v_mul_f32(v(F), flit(1/2048), v(F))
    a.v_lshrrev_b32(v(T5), 4, v(L))
    a.v_lshlrev_b32(v(B), 9, v(T5)); a.v_add_u32(v(B), s(sid), v(B)); a.v_cvt_f32_u32(v(B), v(B))
    a.v_fma_f32(v(B), v(B), v(F), v(T4))
    a.v_fmamk_f32(v(TMP+1), v(F), flit(256.0), v(B))
    a.v_cos_f32(v(TMP+2), v(B)); a.v_sin_f32(v(TMP+3), v(B))
    a.v_cos_f32(v(TMP+4), v(TMP+1)); a.v_sin_f32(v(TMP+5), v(TMP+1))
    a.v_cvt_pk_bf16_f32(v(S8), v(TMP+2), v(TMP+3)); a.v_cvt_pk_bf16_f32(v(S8+1), v(TMP+4), v(TMP+5))
    a.s_mov_b32(s(7), 33*16384)
    a.v_mul_lo_u32(v(F), v(T3), s(7))
    a.s_lshr_b32(s(7), s(sid), 6); a.s_and_b32(s(7), s(7), 1)
    a.v_and_b32(v(T3), 1, v(L)); a.v_xor_b32(v(T3), s(7), v(T3))
    a.v_lshl_add_u32(v(F), v(T3), 5, v(F))
    a.v_lshl_add_u32(v(F), v(T5), 3, v(F))
    a.s_and_b32(s(20), s(sid), 15); a.s_lshl_b32(s(20), s(20), 4)
    a.s_lshr_b32(s(21), s(sid), 4); a.s_add_u32(s(20), s(20), s(21)); a.s_lshl_b32(s(20), s(20), 6)
    if WS_T1: a.s_add_u32(s(20), s(20), WS_T1)
    a.s_add_u32(s(22), s(20), 32*16384)
    a.s_lshl_b32(s(21), s(4), 17); a.s_add_u32(s(20), s(20), s(21))
    a.v_and_b32(v(B), 31, v(L)); a.v_lshlrev_b32(v(B), 3, v(B)); a.v_lshl_add_u32(v(B), v(T2_), 9, v(B))
    a.s_mul_i32(s(7), s(4), EW); a.s_add_u32(s(7), s(7), E1)
    a.v_add_u32(v(B), s(7), v(B))
    a.v_min_u32(v(FK), 15, v(L)); a.v_lshlrev_b32(v(FK), 3, v(FK)); a.v_add_u32(v(FK), s(7), v(FK))
    a.v_mul_u32_u24(v(FH), EW, v(T5)); a.v_and_b32(v(T3), 15, v(L)); a.v_lshl_add_u32(v(FH), v(T3), 3, v(FH))
    a.v_add_u32(v(T3), E1, v(FH))
    a.s_lshl_b32(s(7), s(4), 10)
    a.v_add_u32(v(FH), s(7), v(T3))
    a.v_cmp_eq_u32("vcc", 0, v(L))
    a.v_mov_b32(v(T4), 1.0)
    a.v_mov_b32(v(T5), 0.5)
    a.v_cndmask_b32(v(T4), v(T4), v(T5), "vcc")
    stamp_mid(a, 0)
    a.s_waitcnt("vmcnt(0)")
    stamp_mid(a, 1)
    for sg in range(2):
        for k in range(2):
            for q in range(2):
                a.ds_read_b64_tr_b16(v(AF+8*sg+4*k+2*q, 2), v(T0), mods=f"offset:{sg*2048 + (16*k+4*q)*64}")
    for sg in range(2):
        a.s_waitcnt(f"lgkmcnt({4*(1-sg)})")
        for k in range(2):
            a.I(MF32, v(TRE(sg), 16), v(AF+8*sg+4*k, 4), v(BC+4*k, 4), 0 if k == 0 else v(TRE(sg), 16))
            a.I(MF32, v(TIM(sg), 16), v(AF+8*sg+4*k, 4), v(BS+4*k, 4), 0 if k == 0 else v(TIM(sg), 16))
    PK = lambda sg, part: 12 + 16*sg + 8*part
    NY = [T1_, T2_]
    for sg in range(2):
        for p in range(8):
            rr = 2*p; t = TMP + 4*(p & 1)
            a.v_pk_mul_f32(v(t, 2), v(TIM(sg)+rr, 2), v(TWS+rr, 2))
            a.v_pk_mul_f32(v(t+2, 2), v(TRE(sg)+rr, 2), v(TWS+rr, 2))
            a.v_pk_fma_f32(v(t, 2), v(TRE(sg)+rr, 2), v(TWC+rr, 2), v(t, 2))
            a.v_pk_fma_f32(v(t+2, 2), v(TIM(sg)+rr, 2), v(TWC+rr, 2), v(t+2, 2), mods="neg_lo:[0,0,1] neg_hi:[0,0,1]")
            if p > 0:
                a.v_pk_add_f32(v(TRE(sg), 2), v(TRE(sg), 2), v(TRE(sg)+rr, 2))
            a.v_cvt_pk_bf16_f32(v(PK(sg, 0)+p), v(t), v(t+1))
            a.v_cvt_pk_bf16_f32(v(PK(sg, 1)+p), v(t+2), v(t+3))
        a.v_sub_f32(v(NY[sg]), v(TRE(sg)), v(TRE(sg)+1))
        X = TRE(sg)
        first = True
        for part, Gm in ((0, GRE), (1, GIM)):
            for k in range(2):
                a.I(MF32, v(X, 16), v(Gm+4*k, 4), v(PK(sg, part)+4*k, 4), 0 if first else v(X, 16)); first = False
    EP = TIM(0)
    for sg in range(2):
        a.v_readlane_b32(s(24+sg), v(NY[sg]), 32)
    for sg in range(2):
        a.v_add_f32(v(NY[sg]), s(24+sg), v(NY[sg]))
        a.v_mul_f32(v(NY[sg]), 0.5, v(NY[sg]))
        a.v_cvt_pk_bf16_f32(v(TMP+sg), v(NY[sg]), 0)
    a.ds_write_b64(v(FK), v(TMP, 2), mods="offset:4096")
    for sg in range(2):
        X = TRE(sg)
        a.v_mul_f32(v(X), v(T4), v(X)); a.v_mul_f32(v(X+1), v(T4), v(X+1))
        for p in range(8):
            a.v_cvt_pk_bf16_f32(v(EP+2*p+sg), v(X+2*p), v(X+2*p+1))
            if sg == 1:
                a.ds_write_b64(v(B), v(EP+2*p, 2), mods=f"offset:{(4*(p >> 1) + (p & 1))*256}")
    a.s_waitcnt("lgkmcnt(0)")
    a.s_barrier()
    stamp_mid(a, 2)
    RD, DD, OP = 12, 128, 32
    for i in range(8):
        a.ds_read_b64(v(RD+2*i, 2), v(FH), mods=f"offset:{i*128}")
    a.ds_read_b64(v(RD+16, 2), v(T3), mods="offset:4096")
    for i in range(9):
        a.s_waitcnt(f"lgkmcnt({8-i})")
        a.I(MF16K16, v(DD+4*i, 4), v(RD+2*i, 2), v(S8, 2), 0)
    for i in range(8):
        a.v_cvt_pk_bf16_f32(v(OP+2*i), v(DD+4*i), v(DD+4*i+1))
        a.v_cvt_pk_bf16_f32(v(OP+2*i+1), v(DD+4*i+2), v(DD+4*i+3))
        if i: a.s_add_u32(s(20), s(20), 16384)
        a.buffer_store_dwordx2(v(OP+2*i, 2), v(F), s(16, 4), s(20), mods="offen")
    a.s_cmp_lg_u32(s(4), 0)
    a.s_cbranch_scc1("L_p1_end")
    a.v_cvt_pk_bf16_f32(v(OP+16), v(DD+32), v(DD+33))
    a.v_cvt_pk_bf16_f32(v(OP+17), v(DD+34), v(DD+35))
    a.buffer_store_dwordx2(v(OP+16, 2), v(F), s(16, 4), s(22), mods="offen")
    a.label("L_p1_end")
    endk(a)

L2E = 1.4426950408889634
L2E_HI = struct.unpack("<f", struct.pack("<I", 0x3FB8AA00))[0]
L2E_LO = L2E - L2E_HI
def exp_bf16(a, d, x, t):
    a.v_mul_f32(v(d), flit(L2E_HI), v(x))
    a.v_mul_f32(v(t), flit(L2E_LO), v(x))
    a.v_exp_f32(v(d), v(d)); a.v_exp_f32(v(t), v(t))
    a.v_mul_f32(v(d), v(d), v(t))
    a.v_cvt_pk_bf16_f32(v(d), v(d), v(d))
    a.v_and_b32(v(d), "0xffff0000", v(d))

ROUND2 = [0, 0, 2, 4, 4, 4, 6, 8, 8]
def slot_exp(h, slot):
    if slot <= 8: return slot if h == 0 else 256 + ROUND2[slot]
    if slot <= 11: return 512 + 256*h + 4*(slot - 9)
    if slot <= 13: return 1024 + 256*h + 8*(slot - 12)
    return 1536 + 256*h + 8*(slot - 14)
ROWS_OF = {}
for h in range(2):
    for slot in range(16):
        ROWS_OF.setdefault(slot_exp(h, slot), []).append(8*(slot >> 2) + 4*h + (slot & 3))

def job_kgen(a, sid):
    RS = 272
    srd(a, 8, "logA"); srd(a, 12, "Aim"); srd(a, 20, "Cre"); srd(a, 24, "Cim"); srd(a, 28, "logdt"); srd(a, 16, "ws")
    L, T0, T1_, WA, RA = 1, 2, 3, 4, 5
    lane_wave(a, L, 4, T0)
    a.s_lshr_b32(s(5), s(sid), 3); a.s_lshl_b32(s(5), s(5), 5)
    a.s_and_b32(s(6), s(sid), 7); a.s_add_u32(s(5), s(5), s(6))
    a.s_lshl_b32(s(6), s(4), 3); a.s_add_u32(s(5), s(5), s(6))
    a.s_lshl_b32(s(6), s(5), 8)
    a.s_lshl_b32(s(7), s(5), 1)
    a.v_lshlrev_b32(v(T0), 1, v(L))
    a.v_mov_b32(v(T1_), 0)
    PR = 6
    DT = 14
    for i in range(9): a.v_mov_b32(v(PR+i), 0)
    a.s_waitcnt("lgkmcnt(0)")
    a.buffer_load_short_d16_hi(v(DT), v(T1_), s(28, 4), s(7), mods="offen")
    for p in range(2):
        for i, sr in enumerate((8, 12, 20, 24)):
            a.buffer_load_short_d16_hi(v(PR+4*p+i), v(T0), s(sr, 4), s(6), mods=f"offen offset:{128*p}")
    a.s_mul_i32(s(7), s(4), 32*RS)
    a.v_lshlrev_b32(v(WA), 2, v(L)); a.v_add_u32(v(WA), s(7), v(WA))
    a.v_and_b32(v(RA), 31, v(L)); a.v_mul_u32_u24(v(RA), RS, v(RA))
    a.v_lshrrev_b32(v(T1_), 5, v(L)); a.v_lshl_add_u32(v(RA), v(T1_), 4, v(RA)); a.v_add_u32(v(RA), s(7), v(RA))
    ACC, BF, AFr, ST = 16, 32, 64, 96
    Z1, Z2, W1, W4, Q, CC = 128, 130, 132, 134, 136, 138
    CH = 140
    TM = 160
    A2, BE = 15, 164
    a.s_waitcnt("vmcnt(8)")
    exp_bf16(a, TM, DT, TM+1); a.v_mov_b32(v(DT), v(TM))
    def zpow(d, p):
        a.v_mul_f32(v(TM), flit(float(p)), v(A2)); a.v_mul_f32(v(TM+1), flit(float(p)), v(BE))
        a.v_exp_f32(v(TM), v(TM)); a.v_fract_f32(v(TM+1), v(TM+1))
        a.v_cos_f32(v(d), v(TM+1)); a.v_sin_f32(v(d+1), v(TM+1))
        a.v_mul_f32(v(d), v(d), v(TM)); a.v_mul_f32(v(d+1), v(d+1), v(TM))
    def setup(p):
        P = PR + 4*p
        exp_bf16(a, A2, P, TM)
        a.v_mul_f32(v(A2), v(A2), v(DT)); a.v_mul_f32(v(A2), flit(-L2E), v(A2))
        a.v_mul_f32(v(BE), v(P+1), v(DT)); a.v_mul_f32(v(BE), flit(1/(2*math.pi)), v(BE))
        a.v_mul_f32(v(CC), v(P+2), v(DT)); a.v_mul_f32(v(CC+1), v(P+3), v(DT))
        a.v_add_f32(v(CC), v(CC), v(CC)); a.v_add_f32(v(CC+1), v(CC+1), v(CC+1))
        zpow(W1, 8); zpow(Z1, 1); zpow(Q, 256)
    def cols(direct):
        def emit(j, r):
            a.v_cvt_pk_bf16_f32(v(ST+j), v(r), "-"+v(r+1))
            if direct: a.ds_write_b32(v(WA), v(ST+j), mods=f"offset:{j*RS}")
        a.v_mov_b32(v(ST), "0x00003f80")
        if direct: a.ds_write_b32(v(WA), v(ST), mods="offset:0")
        reg = lambda j: CH + 8*(((j - 1) >> 2) & 1) + 2*((j - 1) & 3)
        a.v_mov_b32(v(reg(1)), v(W1)); a.v_mov_b32(v(reg(1)+1), v(W1+1))
        cmul(a, reg(2), W1, W1)
        emit(1, reg(1))
        cmul(a, reg(3), reg(2), W1); cmul(a, reg(4), reg(2), reg(2))
        emit(2, reg(2))
        a.v_mov_b32(v(W4), v(reg(4))); a.v_mov_b32(v(W4+1), v(reg(4)+1))
        emit(3, reg(3)); emit(4, reg(4))
        for j0 in range(5, 32, 4):
            js = [j for j in range(j0, j0+4) if j < 32]
            for j in js: a.v_pk_mul_f32(v(reg(j), 2), v(reg(j-4), 2), v(W4, 2), mods="op_sel:[0,0] op_sel_hi:[0,1]")
            for j in js: a.v_pk_fma_f32(v(reg(j), 2), v(reg(j-4), 2), v(W4, 2), v(reg(j), 2), mods="op_sel:[1,1,0] op_sel_hi:[1,0,1] neg_lo:[1,0,0]")
            for j in js: emit(j, reg(j))
    rowidx = {}
    def rows():
        n = [0]
        def emit(e, r):
            rowidx[e] = n[0]
            a.v_cvt_pk_bf16_f32(v(ST+n[0]), v(r), v(r+1)); n[0] += 1
        E = lambda b, r: CH + 10*b + r
        cmul(a, Z2, Z1, Z1)
        a.v_mov_b32(v(E(0, 0)), v(CC)); a.v_mov_b32(v(E(0, 0)+1), v(CC+1))
        O = [TM, TM+2]
        cmul(a, O[0], CC, Z1)
        emit(0, CC)
        cmul(a, E(0, 2), CC, Z2); emit(1, O[0])
        for r in (2, 4, 6):
            i = (r >> 1) & 1
            cmul(a, O[i], O[1-i], Z2)
            cmul(a, E(0, r+2), E(0, r), Z2)
            emit(r, E(0, r)); emit(r+1, O[i])
        emit(8, E(0, 8))
        b = 0
        for base, rs in ((256, (0, 2, 4, 6, 8)), (512, (0, 4, 8)), (768, (0, 4, 8)), (1024, (0, 8)), (1280, (0, 8)), (1536, (0, 8)), (1792, (0, 8))):
            for r in rs: a.v_pk_mul_f32(v(E(1-b, r), 2), v(E(b, r), 2), v(Q, 2), mods="op_sel:[0,0] op_sel_hi:[0,1]")
            for r in rs: a.v_pk_fma_f32(v(E(1-b, r), 2), v(E(b, r), 2), v(Q, 2), v(E(1-b, r), 2), mods="op_sel:[1,1,0] op_sel_hi:[1,0,1] neg_lo:[1,0,0]")
            for r in rs: emit(base + r, E(1-b, r))
            b = 1 - b
    def write_rows():
        for e, idx in rowidx.items():
            for row in ROWS_OF[e]:
                a.ds_write_b32(v(WA), v(ST+idx), mods=f"offset:{row*RS}")
    def write_cols():
        for j in range(32): a.ds_write_b32(v(WA), v(ST+j), mods=f"offset:{j*RS}")
    def read_frags(dst):
        for k in range(8): a.ds_read_b128(v(dst+4*k, 4), v(RA), mods=f"offset:{k*32}")
    def mfmas(first):
        for k in range(8):
            a.s_waitcnt(f"lgkmcnt({7-k})")
            a.I(MF32, v(ACC, 16), v(AFr+4*k, 4), v(BF+4*k, 4), 0 if (first and k == 0) else v(ACC, 16))
    a.s_waitcnt("vmcnt(4)")
    stamp_mid(a, 0)
    setup(0); cols(True)
    a.s_waitcnt("lgkmcnt(0)"); read_frags(BF)
    rows()
    a.s_waitcnt("lgkmcnt(0)"); write_rows()
    a.s_waitcnt("lgkmcnt(0)"); read_frags(AFr)
    a.s_waitcnt("vmcnt(0)")
    setup(1)
    mfmas(True)
    stamp_mid(a, 1)
    cols(True)
    a.s_waitcnt("lgkmcnt(0)"); read_frags(BF)
    rows()
    a.s_waitcnt("lgkmcnt(0)"); write_rows()
    a.s_waitcnt("lgkmcnt(0)"); read_frags(AFr)
    mfmas(False)
    stamp_mid(a, 2)
    a.s_lshl_b32(s(5), s(sid), 2); a.s_add_u32(s(5), s(5), s(4)); a.s_lshl_b32(s(5), s(5), 11); a.s_add_u32(s(5), s(5), WS_KD)
    a.v_lshlrev_b32(v(T0), 4, v(L))
    for p in range(8): a.v_cvt_pk_bf16_f32(v(ST+p), v(ACC+2*p), v(ACC+2*p+1))
    a.buffer_store_dwordx4(v(ST, 4), v(T0), s(16, 4), s(5), mods="offen")
    a.buffer_store_dwordx4(v(ST+4, 4), v(T0), s(16, 4), s(5), mods="offen offset:1024")
    endk(a)

def job_trans(a, sid, fwd):
    if fwd: srd(a, 8, "u")
    else: srd(a, 8, "out")
    srd(a, 16, "ws")
    L, T0, CG, OC, VA, VB = 1, 2, 3, 4, 5, 6
    lane_wave(a, L, 4, T0)
    a.s_lshl_b32(s(3), s(sid), 2); a.s_add_u32(s(3), s(3), s(4))
    a.s_and_b32(s(4), s(3), 15)
    a.s_lshr_b32(s(5), s(3), 4)
    a.v_and_b32(v(CG), 7, v(L)); a.v_lshrrev_b32(v(OC), 3, v(L))
    rs = 11 if fwd else 12
    a.v_lshlrev_b32(v(VA), rs+3, v(OC)); a.v_lshl_add_u32(v(VA), v(CG), 4, v(VA))
    a.s_lshl_b32(s(6), s(5), rs+6); a.s_lshl_b32(s(7), s(4), 7); a.s_add_u32(s(6), s(6), s(7))
    a.v_lshrrev_b32(v(VB), 2, v(CG)); a.v_lshlrev_b32(v(VB), 17, v(VB)); a.v_lshl_add_u32(v(VB), v(OC), 6, v(VB))
    a.s_lshl_b32(s(7), s(5), 1)
    a.v_lshrrev_b32(v(T0), 2, v(OC)); a.v_add_u32(v(T0), s(7), v(T0)); a.v_xor_b32(v(T0), v(T0), v(CG)); a.v_and_b32(v(T0), 3, v(T0))
    a.v_lshl_add_u32(v(VB), v(T0), 4, v(VB))
    a.s_lshl_b32(s(20), s(4), 18); a.s_lshl_b32(s(7), s(5), 9); a.s_add_u32(s(20), s(20), s(7))
    a.s_add_u32(s(20), s(20), WS_UT if fwd else WS_OT)
    a.s_mov_b32(s(28), "0x05040100"); a.s_mov_b32(s(29), "0x07060302")
    a.s_waitcnt("lgkmcnt(0)")
    IN, OUT = 8, 40
    stamp_mid(a, 0)
    for i in range(8):
        if fwd:
            a.s_add_u32(s(7), s(6), i << rs)
            a.buffer_load_dwordx4(v(IN+4*i, 4), v(VA), s(8, 4), s(7), mods="offen")
        else:
            a.s_add_u32(s(7), s(20), i*16384)
            a.buffer_load_dwordx4(v(IN+4*i, 4), v(VB), s(16, 4), s(7), mods="offen")
    a.s_waitcnt("vmcnt(0)")
    stamp_mid(a, 1)
    for e in range(8):
        sel = s(28) if e % 2 == 0 else s(29)
        for p in range(4):
            a.v_perm_b32(v(OUT+4*e+p), v(IN+4*(2*p+1)+e//2), v(IN+4*(2*p)+e//2), sel)
        if fwd:
            a.s_add_u32(s(7), s(20), e*16384)
            a.buffer_store_dwordx4(v(OUT+4*e, 4), v(VB), s(16, 4), s(7), mods="offen")
        else:
            a.s_add_u32(s(7), s(6), e << rs)
            a.buffer_store_dwordx4(v(OUT+4*e, 4), v(VA), s(8, 4), s(7), mods="offen")
    endk(a)

def job_conv(a, sid):
    UI = 2048
    KT = 18432; KW = 8320; KO = 4160
    srd(a, 16, "ws"); srd(a, 8, "Dskip")
    L, T0, T1_, T2_, T3 = 1, 2, 3, 4, 5
    lane_wave(a, L, 4, T0)
    a.v_lshlrev_b32(v(T0), 4, v(L))
    a.s_lshl_b32(s(5), s(4), 12)
    a.s_add_u32(s(6), s(5), UI); a.s_mov_b32("m0", s(6))
    a.s_lshl_b32(s(6), s(sid), 14); a.s_add_u32(s(6), s(6), s(5))
    a.s_add_u32(s(21), s(6), WS_OT)
    a.s_add_u32(s(6), s(6), WS_UT)
    a.s_lshl_b32(s(7), s(sid), 2); a.s_add_u32(s(7), s(7), s(4)); a.s_lshl_b32(s(7), s(7), 11); a.s_add_u32(s(7), s(7), WS_KD)
    a.s_lshr_b32(s(22), s(sid), 3); a.s_lshl_b32(s(22), s(22), 5)
    a.s_and_b32(s(23), s(sid), 7); a.s_add_u32(s(22), s(22), s(23))
    a.s_lshl_b32(s(23), s(4), 3); a.s_add_u32(s(22), s(22), s(23)); a.s_lshl_b32(s(22), s(22), 1)
    ACC = 16
    KL = lambda buf, t: 48 + 32*buf + 4*t
    UL = lambda buf, t: 64 + 32*buf + 4*t
    KH = lambda t: 112 + 4*(t-4)
    UH = lambda t: 128 + 4*(t-4)
    SK = 144
    KB = 6
    UB = 10
    DS, EA = 14, 15
    TM = 160
    KD = 112
    a.v_mov_b32(v(DS), 0); a.v_mov_b32(v(T1_), 0)
    a.s_waitcnt("lgkmcnt(0)")
    a.buffer_load_dwordx4(v(KD, 4), v(T0), s(16, 4), s(7), mods="offen")
    a.buffer_load_dwordx4(v(KD+4, 4), v(T0), s(16, 4), s(7), mods="offen offset:1024")
    for i in range(4):
        a.buffer_load_dwordx4(v(T0), s(16, 4), s(6), mods=f"offen offset:{i*1024} lds")
    a.buffer_load_short_d16_hi(v(DS), v(T1_), s(8, 4), s(22), mods="offen")
    a.v_lshlrev_b32(v(T2_), 3, v(0))
    a.v_mov_b32(v(TM), 0); a.v_mov_b32(v(TM+1), 0); a.v_mov_b32(v(TM+2), 0); a.v_mov_b32(v(TM+3), 0)
    a.ds_write_b64(v(T2_), v(TM, 2))
    RHO, G = T2_, T3
    a.v_and_b32(v(RHO), 15, v(L)); a.v_lshrrev_b32(v(G), 4, v(L))
    a.s_mul_i32(s(24), s(4), KW); a.s_add_u32(s(24), s(24), KT)
    a.v_lshl_add_u32(v(T1_), v(G), 3, v(RHO)); a.v_sub_u32(v(T1_), 2055, v(T1_))
    a.v_and_b32(v(TM+4), 1, v(T1_))
    a.v_lshrrev_b32(v(T1_), 1, v(T1_)); a.v_lshlrev_b32(v(T1_), 2, v(T1_))
    a.v_mul_u32_u24(v(TM+4), KO + 4, v(TM+4)); a.v_add_u32(v(T1_), v(T1_), v(TM+4))
    a.v_add_u32(v(T1_), s(24), v(T1_))
    for T in range(4):
        a.v_subrev_u32(v(KB+T), 1024*T + 512 + 448, v(T1_))
    a.v_lshlrev_b32(v(T1_), 1, v(RHO)); a.v_sub_u32(v(T1_), v(T1_), v(G)); a.v_add_u32(v(T1_), 33, v(T1_))
    a.v_lshrrev_b32(v(TM+4), 2, v(T1_))
    a.v_lshlrev_b32(v(T1_), 6, v(T1_))
    for c in range(4):
        a.v_subrev_u32(v(TM+5), c, v(TM+4)); a.v_xor_b32(v(TM+5), s(4), v(TM+5)); a.v_and_b32(v(TM+5), 3, v(TM+5))
        a.v_lshl_add_u32(v(UB+c), v(TM+5), 4, v(T1_))
        a.v_subrev_u32(v(UB+c), c*256 + 1024, v(UB+c))
    a.v_lshrrev_b32(v(TM+4), 1, v(G)); a.v_lshl_add_u32(v(EA), v(RHO), 1, v(TM+4)); a.v_lshlrev_b32(v(EA), 6, v(EA))
    a.v_lshrrev_b32(v(TM+4), 1, v(RHO)); a.v_xor_b32(v(TM+4), s(4), v(TM+4)); a.v_and_b32(v(TM+4), 3, v(TM+4))
    a.v_lshl_add_u32(v(EA), v(TM+4), 4, v(EA))
    a.v_and_b32(v(TM+4), 1, v(G)); a.v_lshl_add_u32(v(EA), v(TM+4), 3, v(EA)); a.v_add_u32(v(EA), UI, v(EA))
    a.v_and_b32(v(T1_), 31, v(L)); a.v_lshlrev_b32(v(T1_), 4, v(T1_))
    a.v_lshrrev_b32(v(TM+4), 5, v(L)); a.v_lshl_add_u32(v(T1_), v(TM+4), 9, v(T1_))
    a.s_add_u32(s(25), s(24), 4080 - 3072)
    a.v_sub_u32(v(T1_), s(25), v(T1_))
    a.v_min_u32(v(TM+4), 4, v(L))
    a.v_lshlrev_b32(v(TM+5), 4, v(TM+4))
    a.v_add_u32(v(TM+6), KO + 4096, v(TM+5))
    a.v_add_u32(v(TM+5), 4096 - 48, v(TM+5))
    a.v_cmp_gt_u32("vcc", 3, v(TM+4))
    a.v_cndmask_b32(v(TM+5), v(TM+5), v(TM+6), "vcc")
    a.v_add_u32(v(TM+5), s(24), v(TM+5))
    a.v_cmp_eq_u32("vcc", 0, v(L))
    a.v_mov_b32(v(TM+6), "0x0000ffff")
    a.v_cndmask_b32(v(TM+6), 0, v(TM+6), "vcc")
    LO1, HI1, LO0, HI0 = 0x0100, 0x0302, 0x0504, 0x0706
    a.v_and_b32(v(TM+4), 1, v(L)); a.v_cmp_eq_u32("vcc", 0, v(TM+4))
    selcache = {}
    nexts = [30]
    def sel(lo, hi):
        key = (hi << 16) | lo
        if key not in selcache:
            selcache[key] = nexts[0]; a.s_mov_b32(s(nexts[0]), "0x%08x" % key); nexts[0] += 1
        return s(selcache[key])
    SA, SB = TM+7, TM+4
    a.v_mov_b32(v(SA), "0x%08x" % ((HI1 << 16) | HI1)); a.v_mov_b32(v(TM+3), "0x%08x" % ((LO1 << 16) | HI1))
    a.v_cndmask_b32(v(SA), v(SA), v(TM+3), "vcc")
    a.v_mov_b32(v(SB), "0x%08x" % ((LO1 << 16) | HI1)); a.v_mov_b32(v(TM+3), "0x%08x" % ((LO1 << 16) | LO1))
    a.v_cndmask_b32(v(SB), v(SB), v(TM+3), "vcc")
    a.v_mov_b32(v(TM+3), 0)
    a.s_waitcnt("vmcnt(5)")
    stamp_mid(a, 0)
    ST = 48
    def pick(dst, slo, shi):
        r0, r1 = KD + slo//2, KD + shi//2
        lo = LO1 if slo % 2 == 0 else HI1
        hi = LO0 if shi % 2 == 0 else HI0
        a.v_perm_b32(v(dst), v(r1), v(r0), sel(lo, hi))
    n = 0
    for grp in range(4):
        if grp == 0: m = list(range(9))
        elif grp == 1: m = [9, 9, 9, 10, 10, 10, 11, 11, 11]
        else:
            s0_ = 12 + 2*(grp-2); m = [s0_]*4 + [None] + [s0_+1]*4
        for odd in range(2):
            base = ST + 4*n; n += 1
            for q in range(4):
                hi_k = 6 - 2*q + odd; lo_k = hi_k + 1
                if m[lo_k] is None:
                    a.v_perm_b32(v(base+q), v(KD+m[0]//2), v(KD+m[0]//2), v(SB))
                elif m[hi_k] is None:
                    a.v_perm_b32(v(base+q), v(KD+m[0]//2), v(KD+m[0]//2), v(SA))
                else:
                    pick(base+q, m[lo_k], m[hi_k])
            a.ds_write_b128(v(T1_), v(base, 4), mods=f"offset:{(3-grp)*1024 + odd*KO}")
    a.v_and_b32(v(TM), v(TM+6), v(KD))
    a.ds_write_b128(v(TM+5), v(TM, 4))
    a.s_waitcnt("vmcnt(0) lgkmcnt(0)")
    a.s_barrier()
    stamp_mid(a, 1)
    def rdK(dst, c, t):
        o = (7-c)*16 + (1 - (t & 1))*128
        return [lambda: a.ds_read2_b32(v(dst, 2), v(KB + (t >> 1)), mods=f"offset0:{o} offset1:{o+1}"),
                lambda: a.ds_read2_b32(v(dst+2, 2), v(KB + (t >> 1)), mods=f"offset0:{o+2} offset1:{o+3}")]
    def rdU(dst, c, t):
        return [lambda: a.ds_read_b128(v(dst, 4), v(UB + (c & 3)), mods=f"offset:{t*2048 + (1-(c >> 2))*1024}")]
    def Kf(c, t): return KL(c & 1, t) if t < 4 else KH(t)
    def Uf(c, t): return UL(c & 1, t) if t < 4 else UH(t)
    for t in range(8):
        for f in rdK(Kf(0, t), 0, t) + rdU(Uf(0, t), 0, t): f()
    started = set()
    for c in range(8):
        seq = []
        for hgh in (7, 6, 5, 4):
            for lo in range(8-hgh): seq.append((lo, hgh, None))
            seq[-1] = (seq[-1][0], seq[-1][1], ("U", hgh))
            for lo in range(8-hgh): seq.append((hgh, lo, None))
            seq[-1] = (seq[-1][0], seq[-1][1], ("K", hgh))
        for tk in range(4):
            for tu in range(4): seq.append((tk, tu, None))
        pend = []
        if c < 7:
            for t in range(4): pend += rdK(Kf(c+1, t), c+1, t) + rdU(Uf(c+1, t), c+1, t)
        extra = []
        if c == 0:
            for al in range(8):
                pend.append(lambda al=al: a.ds_read_b64(v(SK+2*al, 2), v(EA), mods=f"offset:{al*2048}"))
        if c in (1, 2):
            for i in range(8*(c-1), 8*c):
                def f(i=i):
                    t = TM + 2*(i & 1)
                    a.v_lshlrev_b32(v(t), 16, v(SK+i)); a.v_and_b32(v(t+1), "0xffff0000", v(SK+i))
                    a.v_mul_f32(v(t), v(t), v(DS)); a.v_mul_f32(v(t+1), v(t+1), v(DS))
                    a.v_cvt_pk_bf16_f32(v(SK+i), v(t), v(t+1))
                extra.append(f)
        a.s_waitcnt("lgkmcnt(0)")
        for (tk, tu, fr) in seq:
            al = tk + tu
            a.I(MF16, v(ACC+4*al, 4), v(Kf(c, tk), 4), v(Uf(c, tu), 4), v(ACC+4*al, 4) if al in started else 0)
            started.add(al)
            if fr and c < 7:
                pend = (rdU(UH(fr[1]), c+1, fr[1]) if fr[0] == "U" else rdK(KH(fr[1]), c+1, fr[1])) + pend
            if pend: pend.pop(0)()
            elif extra: extra.pop(0)()
        assert not pend and not extra
    stamp_mid(a, 2)
    for al in range(8):
        for hh in range(2):
            i = 2*al + hh; t = TM + 2*(i & 3)
            a.v_lshlrev_b32(v(t), 16, v(SK+i)); a.v_and_b32(v(t+1), "0xffff0000", v(SK+i))
            a.v_pk_add_f32(v(t, 2), v(t, 2), v(ACC+2*i, 2))
            a.v_cvt_pk_bf16_f32(v(SK+i), v(t), v(t+1))
        a.ds_write_b64(v(EA), v(SK+2*al, 2), mods=f"offset:{al*2048}")
    a.s_waitcnt("lgkmcnt(0)")
    a.s_barrier()
    stamp_mid(a, 3)
    a.v_add_u32(v(T1_), s(5), v(T0))
    for i in range(4): a.ds_read_b128(v(48+4*i, 4), v(T1_), mods=f"offset:{UI + i*1024}")
    for i in range(4):
        a.s_waitcnt(f"lgkmcnt({3-i})")
        a.buffer_store_dwordx4(v(48+4*i, 4), v(T0), s(16, 4), s(21), mods=f"offen offset:{i*1024}")
    endk(a)

def job_p2(a, sid):
    R0, R1 = 0, 16384
    srd(a, 16, "ws"); srd(a, 8, "wr"); srd(a, 12, "wi")
    L, T0, T1_, T2_, T3, K, G = 1, 2, 3, 4, 5, 6, 7
    F, B, VW, VS = 8, 9, 10, 11
    lane_wave(a, L, 4, T0)
    a.s_and_b32(s(5), s(sid), 7); a.s_lshr_b32(s(6), s(sid), 3)
    a.s_mul_i32(s(7), s(5), 33); a.s_add_u32(s(7), s(7), s(6))
    a.s_lshl_b32(s(20), s(7), 14); a.s_lshl_b32(s(21), s(4), 12); a.s_add_u32(s(20), s(20), s(21))
    if WS_T1: a.s_add_u32(s(20), s(20), WS_T1)
    a.s_mov_b32("m0", s(21))
    a.v_lshlrev_b32(v(T0), 4, v(L))
    a.v_and_b32(v(K), 15, v(L)); a.v_lshrrev_b32(v(G), 4, v(L))
    CN = lambda j: 12 + 6*j
    WR = lambda j: 44 + 8*j
    WI = lambda j: 48 + 8*j
    OPR, ACC, PKD, TM = 76, 92, 124, 140
    for i in range(32): a.v_mov_b32(v(44+i), 0)
    a.s_mov_b32(s(22), 4*131328)
    a.v_mul_lo_u32(v(VW), v(G), s(22)); a.v_lshl_add_u32(v(VW), v(K), 1, v(VW))
    a.s_mul_i32(s(22), s(5), 1026); a.s_lshl_b32(s(23), s(6), 5); a.s_add_u32(s(22), s(22), s(23))
    a.s_mul_i32(s(23), s(4), 4*8208); a.s_add_u32(s(22), s(22), s(23))
    a.s_waitcnt("lgkmcnt(0)")
    for i in range(4):
        a.buffer_load_dwordx4(v(T0), s(16, 4), s(20), mods=f"offen offset:{i*1024} lds")
    for j in range(4):
        for r in range(4):
            a.s_add_u32(s(23), s(22), j*8208 + r*131328)
            a.buffer_load_short_d16_hi(v(WR(j)+r), v(VW), s(8, 4), s(23), mods="offen")
            a.buffer_load_short_d16_hi(v(WI(j)+r), v(VW), s(12, 4), s(23), mods="offen")
    a.v_cvt_f32_u32(v(F), v(K)); a.v_mul_f32(v(F), flit(1/256), v(F))
    a.v_lshlrev_b32(v(T1_), 6, v(G)); a.v_cvt_f32_u32(v(T2_), v(T1_)); a.v_mul_f32(v(T2_), v(T2_), v(F))
    a.s_lshl_b32(s(23), s(4), 2)
    a.v_add_u32(v(T1_), s(23), v(T1_)); a.v_cvt_f32_u32(v(B), v(T1_)); a.v_mul_f32(v(B), v(B), v(F))
    for j in range(5):
        for ep in range(2):
            bb = B if j < 4 else T2_; jj = j if j < 4 else 0
            r0 = rev(a, TM, F, 32*ep + jj, bb); r1 = rev(a, TM+1, F, 32*ep + 16 + jj, bb)
            a.v_cos_f32(v(TM+2), v(r0)); a.v_cos_f32(v(TM+3), v(r1))
            a.v_sin_f32(v(TM+4), v(r0)); a.v_sin_f32(v(TM+5), v(r1))
            if j == 4:
                for q in range(4): a.v_mul_f32(v(TM+2+q), flit(2.0**-10), v(TM+2+q))
            a.v_cvt_pk_bf16_f32(v(CN(j)+ep), "-"+v(TM+4), "-"+v(TM+5))
            a.v_cvt_pk_bf16_f32(v(CN(j)+2+ep), v(TM+2), v(TM+3))
            a.v_cvt_pk_bf16_f32(v(CN(j)+4+ep), v(TM+4), v(TM+5))
    a.v_bfe_u32(v(T1_), v(L), 2, 2); a.v_lshl_add_u32(v(T1_), v(G), 2, v(T1_)); a.v_lshlrev_b32(v(T1_), 6, v(T1_))
    a.v_and_b32(v(T2_), 3, v(L)); a.v_lshl_add_u32(v(T1_), v(T2_), 3, v(T1_))
    a.v_add_u32(v(T1_), s(21), v(T1_))
    a.v_and_b32(v(T2_), 1, v(G)); a.v_lshl_add_u32(v(T1_), v(T2_), 5, v(T1_))
    a.v_xor_b32(v(T2_), 32, v(T1_))
    a.v_lshlrev_b32(v(T3), 12, v(G)); a.v_lshl_add_u32(v(T3), v(K), 4, v(T3))
    a.s_lshl_b32(s(23), s(4), 8); a.v_add_u32(v(T3), s(23), v(T3))
    a.v_add_u32(v(F), s(21), v(T0))
    a.s_mov_b32(s(23), 16*264*64)
    a.v_mul_lo_u32(v(VS), v(K), s(23)); a.v_lshl_add_u32(v(VS), v(G), 4, v(VS))
    a.s_lshl_b32(s(24), s(7), 6); a.s_add_u32(s(24), s(24), WS_T2)
    a.s_mul_i32(s(23), s(4), 4*264*64); a.s_add_u32(s(24), s(24), s(23))
    RE = lambda j: ACC + 8*j
    IM = lambda j: ACC + 8*j + 4
    stamp_mid(a, 0)
    a.s_waitcnt("vmcnt(32)")
    stamp_mid(a, 1)
    for j in range(4):
        a.ds_read_b64_tr_b16(v(OPR+4*j, 2), v(T1_), mods=f"offset:{j*1024}")
        a.ds_read_b64_tr_b16(v(OPR+4*j+2, 2), v(T2_), mods=f"offset:{j*1024}")
    for j in range(4):
        a.s_waitcnt(f"lgkmcnt({6-2*j})")
        a.I(MF16, v(RE(j), 4), v(CN(j)+2, 4), v(OPR+4*j, 4), 0)
        a.I(MF16, v(IM(j), 4), v(CN(j), 4), v(OPR+4*j, 4), 0)
    def exch(region, first, second):
        for r in range(4):
            a.v_cvt_pk_bf16_f32(v(PKD+4*r), v(first(0)+r), v(first(1)+r))
            a.v_cvt_pk_bf16_f32(v(PKD+4*r+1), v(first(2)+r), v(first(3)+r))
            a.v_cvt_pk_bf16_f32(v(PKD+4*r+2), v(second(0)+r), v(second(1)+r))
            a.v_cvt_pk_bf16_f32(v(PKD+4*r+3), v(second(2)+r), v(second(3)+r))
            a.ds_write_b128(v(T3), v(PKD+4*r, 4), mods=f"offset:{region + r*1024}")
        a.s_waitcnt("lgkmcnt(0)")
        a.s_barrier()
        for j in range(4): a.ds_read_b128(v(OPR+4*j, 4), v(F), mods=f"offset:{region + j*1024}")
    exch(R1, RE, IM)
    for j in range(4):
        a.s_waitcnt(f"lgkmcnt({3-j})")
        a.I(MF16, v(RE(j), 4), v(CN(4)+2, 4), v(OPR+4*j, 4), 0)
        a.I(MF16, v(IM(j), 4), v(CN(4), 4), v(OPR+4*j, 4), 0)
    stamp_mid(a, 2)
    a.s_waitcnt("vmcnt(0)")
    stamp_mid(a, 3)
    for j in range(4):
        for p in range(2):
            t = TM + 4*p; r = 2*p
            a.v_pk_mul_f32(v(t, 2), v(IM(j)+r, 2), v(WI(j)+r, 2))
            a.v_pk_mul_f32(v(t+2, 2), v(RE(j)+r, 2), v(WI(j)+r, 2))
            a.v_pk_fma_f32(v(t, 2), v(RE(j)+r, 2), v(WR(j)+r, 2), v(t, 2), mods="neg_lo:[0,0,1] neg_hi:[0,0,1]")
            a.v_pk_fma_f32(v(t+2, 2), v(IM(j)+r, 2), v(WR(j)+r, 2), v(t+2, 2))
            a.v_cvt_pk_bf16_f32(v(PKD+4*j+2+p), v(t), v(t+1))
            a.v_cvt_pk_bf16_f32(v(PKD+4*j+p), v(t+2), v(t+3))
        a.I(MF16, v(RE(j), 4), v(CN(j), 4), v(PKD+4*j, 4), 0)
        a.I(MF16, v(IM(j), 4), v(CN(j)+2, 4), v(PKD+4*j, 4), 0)
    stamp_mid(a, 4)
    exch(R0, IM, RE)
    for j in range(4):
        a.s_waitcnt(f"lgkmcnt({3-j})")
        a.I(MF16, v(RE(j), 4), v(OPR+4*j, 4), v(CN(4), 4), 0)
        a.I(MF16, v(IM(j), 4), v(OPR+4*j, 4), v(CN(4)+2, 4), 0)
    for j in range(4):
        a.v_cvt_pk_bf16_f32(v(PKD+4*j), v(RE(j)), v(RE(j)+1)); a.v_cvt_pk_bf16_f32(v(PKD+4*j+1), v(RE(j)+2), v(RE(j)+3))
        a.v_cvt_pk_bf16_f32(v(PKD+4*j+2), v(IM(j)), v(IM(j)+1)); a.v_cvt_pk_bf16_f32(v(PKD+4*j+3), v(IM(j)+2), v(IM(j)+3))
        if j: a.s_add_u32(s(24), s(24), 264*64)
        a.buffer_store_dwordx4(v(PKD+4*j, 4), v(VS), s(16, 4), s(24), mods="offen")
    endk(a)

def job_p3(a, sid):
    E3 = 17408
    srd(a, 16, "ws"); srd(a, 8, "out")
    L, T0, T1_, T2_, T3, T4, G = 1, 2, 3, 4, 5, 6, 7
    FD, FH, F, B = 8, 9, 10, 11
    lane_wave(a, L, 4, T0)
    a.v_lshlrev_b32(v(T0), 4, v(L))
    a.s_lshl_b32(s(5), s(4), 12); a.s_mov_b32("m0", s(5))
    a.s_mul_i32(s(6), s(sid), 264*64); a.s_add_u32(s(6), s(6), WS_T2)
    a.s_add_u32(s(7), s(6), s(5))
    a.s_waitcnt("lgkmcnt(0)")
    for i in range(4):
        a.buffer_load_dwordx4(v(T0), s(16, 4), s(7), mods=f"offen offset:{i*1024} lds")
    a.s_cmp_lg_u32(s(4), 0)
    a.s_cbranch_scc1("L_p3_skip")
    a.s_mov_b32("m0", 16384)
    a.s_add_u32(s(7), s(6), 16384)
    a.buffer_load_dwordx4(v(T0), s(16, 4), s(7), mods="offen lds")
    a.label("L_p3_skip")
    S8, H = 12, 16
    Hf = lambda k, po: H + 8*k + 4*po
    TWC, TWS = 32, 48
    Jf = lambda pin, k: 64 + 8*pin + 4*k
    RD = 80
    URE = lambda sg: 100 + 32*sg
    UIM = lambda sg: 116 + 32*sg
    TMP = 164
    a.v_lshrrev_b32(v(G), 4, v(L))
    a.v_bfe_u32(v(T1_), v(L), 1, 3); a.v_lshlrev_b32(v(T1_), 8, v(T1_)); a.v_add_u32(v(T1_), s(sid), v(T1_))
    a.v_cvt_f32_u32(v(F), v(T1_)); a.v_mul_f32(v(F), flit(1/2048), v(F))
    a.v_and_b32(v(T1_), 1, v(G)); a.v_and_b32(v(T2_), 1, v(L)); a.v_sub_u32(v(T1_), v(T1_), v(T2_)); a.v_cvt_f32_i32(v(T1_), v(T1_))
    a.v_mul_f32(v(T1_), flit(0.25), v(T1_))
    a.v_lshrrev_b32(v(T2_), 5, v(L)); a.v_cvt_f32_u32(v(FH), v(T2_))
    a.v_mul_f32(v(B), v(F), v(FH)); a.v_fma_f32(v(B), v(B), 4.0, v(T1_))
    for e in range(4):
        r0 = rev(a, TMP+e, F, e, B)
        a.v_cos_f32(v(TMP+4+e), v(r0))
    a.v_cvt_pk_bf16_f32(v(S8), v(TMP+4), v(TMP+5)); a.v_cvt_pk_bf16_f32(v(S8+1), v(TMP+6), v(TMP+7))
    a.v_bfe_u32(v(T1_), v(L), 2, 2); a.v_lshl_add_u32(v(T1_), v(T2_), 2, v(T1_)); a.v_mul_u32_u24(v(T1_), 33*64, v(T1_))
    a.v_and_b32(v(T3), 3, v(L)); a.v_lshl_add_u32(v(T1_), v(T3), 4, v(T1_))
    a.v_and_b32(v(T3), 1, v(G)); a.v_lshl_add_u32(v(T1_), v(T3), 3, v(T1_))
    a.s_lshl_b32(s(7), s(4), 9)
    a.v_add_u32(v(T3), s(7), v(T1_))
    a.v_bfe_u32(v(T4), v(L), 2, 1); a.v_lshlrev_b32(v(T4), 4, v(T4))
    a.v_bfe_u32(v(FD), v(L), 3, 2); a.v_lshl_add_u32(v(T4), v(FD), 2, v(T4))
    a.v_and_b32(v(FD), 3, v(L)); a.v_add_u32(v(T4), v(T4), v(FD)); a.v_cvt_f32_u32(v(FD), v(T4))
    a.v_mul_f32(v(F), flit(1/32), v(FD)); a.v_mul_f32(v(B), v(F), v(FH)); a.v_mul_f32(v(B), 4.0, v(B))
    for k in range(2):
        for q in range(4):
            t = TMP + 4*(q & 1)
            r0 = rev(a, t, F, 8*k + q, B)
            a.v_cos_f32(v(t+1), v(r0)); a.v_sin_f32(v(t+2), v(r0))
            a.v_cvt_pk_bf16_f32(v(Hf(k, 0)+q), v(t+1), "-"+v(t+2))
            a.v_cvt_pk_bf16_f32(v(Hf(k, 1)+q), v(t+2), v(t+1))
    a.v_mul_f32(v(F), flit(1/1024), v(FD)); a.v_mul_f32(v(B), v(F), v(FH)); a.v_mul_f32(v(B), 4.0, v(B))
    for rho in range(16):
        r0 = rev(a, TMP + (rho & 3), F, 8*(rho >> 2) + (rho & 3), B)
        a.v_cos_f32(v(TWC+rho), v(r0)); a.v_sin_f32(v(TWS+rho), v(r0))
    a.v_and_b32(v(T4), 31, v(L)); a.v_cvt_f32_u32(v(F), v(T4)); a.v_mul_f32(v(F), flit(1/32), v(F))
    a.v_mul_f32(v(B), v(F), v(FH)); a.v_mul_f32(v(B), 4.0, v(B))
    for k in range(2):
        for jp in range(4):
            j = 2*jp
            r0 = rev(a, TMP+0, F, 16*k + 8*(j >> 2) + (j & 3), B); r1 = rev(a, TMP+1, F, 16*k + 8*(j >> 2) + (j & 3) + 1, B)
            a.v_cos_f32(v(TMP+2), v(r0)); a.v_cos_f32(v(TMP+3), v(r1))
            a.v_sin_f32(v(TMP+4), v(r0)); a.v_sin_f32(v(TMP+5), v(r1))
            a.v_cvt_pk_bf16_f32(v(Jf(0, k)+jp), v(TMP+2), v(TMP+3))
            a.v_cvt_pk_bf16_f32(v(Jf(1, k)+jp), "-"+v(TMP+4), "-"+v(TMP+5))
    a.v_and_b32(v(FD), 1, v(L)); a.v_cvt_f32_u32(v(FD), v(FD)); a.v_fma_f32(v(FD), v(FD), -2.0, 1.0)
    a.v_sub_f32(v(FH), 1.0, v(FH)); a.v_mul_f32(v(FD), v(FD), v(FH))
    a.v_and_b32(v(F), 15, v(L)); a.v_lshlrev_b32(v(F), 4, v(F)); a.v_lshl_add_u32(v(F), v(G), 12, v(F)); a.v_add_u32(v(F), s(7), v(F))
    a.v_add_u32(v(B), s(5), v(T0))
    a.v_lshlrev_b32(v(T4), 6, v(T4)); a.v_lshl_add_u32(v(T4), v(T2_), 5, v(T4))
    a.s_lshl_b32(s(20), s(sid), 12); a.s_lshl_b32(s(21), s(4), 21); a.s_add_u32(s(20), s(20), s(21))
    a.s_add_u32(s(21), s(20), 256*4096)
    a.s_lshl_b32(s(22), s(4), 4)
    stamp_mid(a, 0)
    a.s_waitcnt("vmcnt(0)")
    a.s_barrier()
    stamp_mid(a, 1)
    tiles = [(p, e) for p in range(2) for e in range(4)]
    for i, (p, e) in enumerate(tiles):
        a.ds_read_b64_tr_b16(v(RD+2*i, 2), v(T3), mods=f"offset:{(p + 2*e)*64}")
    a.ds_read_b64_tr_b16(v(RD+16, 2), v(T1_), mods=f"offset:{32*64}")
    DD = 100
    EP = 136
    for i in range(9):
        a.s_waitcnt(f"lgkmcnt({8-i})")
        a.I(MF16K16, v(DD+4*i, 4), v(S8, 2), v(RD+2*i, 2), 0)
    for p in range(2):
        for sg in range(2):
            base = EP + 8*p + 4*sg
            for e in range(4):
                d = DD + 4*(4*p + e) + 2*sg
                a.v_cvt_pk_bf16_f32(v(base+e), v(d), v(d+1))
            a.ds_write_b128(v(F), v(base, 4), mods=f"offset:{E3 + sg*2048 + p*256}")
    a.v_readlane_b32(s(24), v(DD+32), s(22)); a.v_readlane_b32(s(25), v(DD+34), s(22))
    a.s_waitcnt("lgkmcnt(0)")
    a.s_barrier()
    stamp_mid(a, 2)
    AF = 80
    for sg in range(2):
        for k in range(2):
            a.ds_read_b128(v(AF+8*sg+4*k, 4), v(B), mods=f"offset:{E3 + sg*2048 + k*1024}")
    for sg in range(2):
        for k in range(2):
            a.s_waitcnt(f"lgkmcnt({3-2*sg-k})")
            a.I(MF32, v(URE(sg), 16), v(AF+8*sg+4*k, 4), v(Hf(k, 0), 4), 0 if k == 0 else v(URE(sg), 16))
            a.I(MF32, v(UIM(sg), 16), v(AF+8*sg+4*k, 4), v(Hf(k, 1), 4), 0 if k == 0 else v(UIM(sg), 16))
    PK = lambda sg, part: (80 + 8*part) if sg == 0 else (16 + 8*part)
    for sg in range(2):
        a.v_fmac_f32(v(URE(sg)), s(24+sg), v(FD))
        for p in range(8):
            rr = 2*p; t = TMP + 4*(p & 1)
            a.v_pk_mul_f32(v(t, 2), v(UIM(sg)+rr, 2), v(TWS+rr, 2))
            a.v_pk_mul_f32(v(t+2, 2), v(URE(sg)+rr, 2), v(TWS+rr, 2))
            a.v_pk_fma_f32(v(t, 2), v(URE(sg)+rr, 2), v(TWC+rr, 2), v(t, 2), mods="neg_lo:[0,0,1] neg_hi:[0,0,1]")
            a.v_pk_fma_f32(v(t+2, 2), v(UIM(sg)+rr, 2), v(TWC+rr, 2), v(t+2, 2))
            a.v_cvt_pk_bf16_f32(v(PK(sg, 0)+p), v(t), v(t+1))
            a.v_cvt_pk_bf16_f32(v(PK(sg, 1)+p), v(t+2), v(t+3))
        Y = URE(sg); first = True
        for part in range(2):
            for k in range(2):
                a.I(MF32, v(Y, 16), v(PK(sg, part)+4*k, 4), v(Jf(part, k), 4), 0 if first else v(Y, 16)); first = False
    for sg in range(2):
        Y = URE(sg); O = UIM(sg)
        for p in range(8): a.v_cvt_pk_bf16_f32(v(O+p), v(Y+2*p), v(Y+2*p+1))
        a.buffer_store_dwordx4(v(O, 4), v(T4), s(8, 4), s(20+sg), mods="offen offset:2048")
        a.buffer_store_dwordx4(v(O+4, 4), v(T4), s(8, 4), s(20+sg), mods="offen offset:2064")
    endk(a)

def code_prefetch(a, vdst, nwg=32):
    a.s_cmp_ge_u32(s(2), nwg)
    a.s_cbranch_scc1("L_nopf")
    a.s_getpc_b64(s(4, 2))
    a.label("L_pfpc")
    a.s_sub_u32(s(4), s(4), "(L_pfpc-k1_kernel)")
    a.s_subb_u32(s(5), s(5), 0)
    a.v_lshlrev_b32(v(1), 6, v(0))
    a.v_add_u32(v(2), 16384, v(1))
    a.v_min_u32(v(2), "(L_code_end-k1_kernel-4)", v(2))
    a.global_load_dword(v(vdst), v(1), s(4, 2))
    a.global_load_dword(v(vdst), v(2), s(4, 2))
    a.label("L_nopf")

def build_kernel(name, jobs, vgpr, pre=None):
    a = Asm()
    start = 0
    if pre: pre(a)
    for i, (cnt, fn) in enumerate(jobs):
        a.s_cmp_lt_u32(s(2), start + cnt)
        a.s_cbranch_scc1(f"L_{name}_{i}")
        start += cnt
    a.s_endpgm()
    body = a.finalize()
    start = 0
    for i, (cnt, fn) in enumerate(jobs):
        a = Asm()
        a.label(f"L_{name}_{i}")
        stamp_start(a)
        if STAMP:
            for q in range(60, 72): a.s_mov_b32(s(q), 0)
        a.s_sub_u32(s(3), s(2), start)
        a.s_mov_b32(s(40), s(3))
        fn(a, 40)
        body += a.finalize()
        start += cnt
    KIDX[0] += 1
    return kernel(name, body, vgpr), start

def main(out):
    hdr = open("concat_heads__ssm_conv_s4d__spectral_gfnet__prompt.s.ref").read().split("; Override launch")[0]
    k1, n1 = build_kernel("k1_kernel", [(256, job_kgen), (256, job_p1), (128, lambda a, sid: job_trans(a, sid, True))], 168,
                          pre=(lambda a: code_prefetch(a, 167)) if OPT.get("pf", 1) else None)
    k2, n2 = build_kernel("k2_kernel", [(256, job_conv), (264, job_p2)], 168)
    k3, n3 = build_kernel("k3_kernel", [(256, job_p3), (128, lambda a, sid: job_trans(a, sid, False))], 172)
    txt = hdr
    txt += f"; @launch kernel=k1_kernel grid=({n1},1,1) block=(256,1,1) lds=34816\n"
    txt += f"; @launch kernel=k2_kernel grid=({n2},1,1) block=(256,1,1) lds=51712\n"
    txt += f"; @launch kernel=k3_kernel grid=({n3},1,1) block=(256,1,1) lds=33792\n"
    txt += '.amdgcn_target "amdgcn-amd-amdhsa--gfx950"\n' + k1 + k2 + k3 + ".text\nL_code_end:\n    s_endpgm\n"
    open(out, "w").write(txt)

if __name__ == "__main__":
    if "--stamp" in sys.argv: STAMP = True
    for x in sys.argv[2:]:
        if "=" in x: k_, v_ = x.split("="); OPT[k_] = int(v_)
    OPT["dbgsel"] = [[44, 60, 52], [62, 52], [62, 52], [44, 62, 52], [62, 52], [44, 62, 52], [52]]
    main(sys.argv[1])
```
